```python
import torch

def _softmax(x, axis=-1):
    return torch.softmax(x, dim=axis)
def _gelu(x):
    return torch.nn.functional.gelu(x, approximate="tanh")
def _silu(x):
    return torch.nn.functional.silu(x)
def _sigmoid(x):
    return torch.sigmoid(x)
def _layernorm(x, axis=-1, eps=1e-5):
    m = x.mean(dim=axis, keepdim=True)
    v = x.var(dim=axis, keepdim=True, unbiased=False)
    return (x - m) / torch.sqrt(v + eps)
def _scatter_add(tgt, idx, src, axis=0):
    return tgt.clone().index_add_(axis, idx, src)
def _segment_sum(src, seg, n):
    out = torch.zeros((n,) + src.shape[1:], dtype=src.dtype)
    return out.index_add_(0, seg, src)
def _pad(x, pw):
    flat = tuple(v for pair in reversed(pw) for v in pair)
    return torch.nn.functional.pad(x, flat)

kernel_name = 'concat_heads__linear_kernel_hedgehog__ssm_conv_s4d__prompt'

def setup_inputs():

    _w = (lambda a: (lambda t: t.to(torch.bfloat16) if t.is_floating_point() else t)(torch.as_tensor(a)))
    def _A_setup():
        B, S, D, H = 1, 2048, 1024, 32
        Dh = D // H
        return {
            "x": _w((lambda *s: torch.randn(*s, dtype=torch.bfloat16) * 0.4)(B, S, D)),
            "wqkv": _w((lambda *s: torch.randn(*s, dtype=torch.bfloat16) * 0.4)(D, 3 * D)),
            "w_phi": _w((lambda *s: torch.randn(*s, dtype=torch.bfloat16) * 0.4)(H, Dh, Dh) * (Dh ** -0.5)),
            "wo": _w((lambda *s: torch.randn(*s, dtype=torch.bfloat16) * 0.05)(D, D)),
        }
    _A_in = _A_setup()

    def _B_setup():
        Bsz, L, D, N = 1, 2048, 1024, 128
        return {
            "u": _w((lambda *s: torch.randn(*s, dtype=torch.bfloat16) * 0.05)(Bsz, L, D)),
            "log_A_real": _w((lambda *s: torch.randn(*s, dtype=torch.bfloat16) * 3.2)(D, N) * 0.5),
            "A_imag": _w((lambda *s: torch.randn(*s, dtype=torch.bfloat16) * 0.2)(D, N) * 3.14),
            "C_real": _w((lambda *s: torch.randn(*s, dtype=torch.bfloat16) * 3.2)(D, N) / N ** 0.5),
            "C_imag": _w((lambda *s: torch.randn(*s, dtype=torch.bfloat16) * 3.2)(D, N) / N ** 0.5),
            "log_dt": _w((lambda *s: torch.randn(*s, dtype=torch.bfloat16) * 0.2)(D) * 0.5 - 4.0),
            "D_skip": _w((lambda *s: torch.randn(*s, dtype=torch.bfloat16) * 0.2)(D)),
        }
    _B_in = _B_setup()

    return {
        "A_x": _A_in["x"],
        "A_wqkv": _A_in["wqkv"],
        "A_w_phi": _A_in["w_phi"],
        "A_wo": _A_in["wo"],
        "B_u": _B_in["u"],
        "B_log_A_real": _B_in["log_A_real"],
        "B_A_imag": _B_in["A_imag"],
        "B_C_real": _B_in["C_real"],
        "B_C_imag": _B_in["C_imag"],
        "B_log_dt": _B_in["log_dt"],
        "B_D_skip": _B_in["D_skip"],
    }

def reference(A_x, A_wqkv, A_w_phi, A_wo, B_u, B_log_A_real, B_A_imag, B_C_real, B_C_imag, B_log_dt, B_D_skip):
    def _A_ref(x, wqkv, w_phi, wo):
        B, S, D = x.shape
        H = 32; Dh = D // H
        qkv = (lambda x, *d: x.permute(*d))((x @ wqkv).reshape(B, S, 3, H, Dh), 2, 0, 3, 1, 4)
        q, k, v = qkv[0], qkv[1], qkv[2]
        pq = torch.einsum("bhsd,hdf->bhsf", q, w_phi)
        pk = torch.einsum("bhsd,hdf->bhsf", k, w_phi)
        phi_q = torch.concatenate([_softmax(pq, axis=-1), _softmax(-pq, axis=-1)], axis=-1)
        phi_k = torch.concatenate([_softmax(pk, axis=-1), _softmax(-pk, axis=-1)], axis=-1)
        kv = torch.einsum("bhsf,bhsd->bhfd", phi_k, v)
        z  = torch.einsum("bhsf->bhf", phi_k)
        num = torch.einsum("bhqf,bhfd->bhqd", phi_q, kv)
        den = torch.einsum("bhqf,bhf->bhq", phi_q, z)[..., None] + 1e-6
        o = num / den
        return (lambda x, *d: x.permute(*d))(o, 0, 2, 1, 3).reshape(B, S, D) @ wo

    def _B_ref(u, log_A_real, A_imag, C_real, C_imag, log_dt, D_skip):
        L = u.shape[1]
        dt = torch.exp(log_dt)
        A = -torch.exp(log_A_real) + 1j * A_imag
        C = (C_real + 1j * C_imag) * dt[:, None]
        pos = (lambda x, dt: x.to(dt))(torch.arange(L), log_dt.dtype)
        P = torch.exp((A * dt[:, None])[:, :, None] * pos[None, None, :])
        K = 2.0 * torch.einsum("dn,dnl->dl", C, P).real
        L2 = 2 * L
        u_t = (lambda x, *d: x.permute(*d))(u, 0, 2, 1)
        Kf = (lambda x, *a, **k: torch.fft.rfft(x.float(), *a, **k))(K, L2)
        Uf = (lambda x, *a, **k: torch.fft.rfft(x.float(), *a, **k))(u_t, L2)
        y = (lambda x, *a, **k: torch.fft.irfft(x, *a, **k).to(torch.bfloat16))(Uf * Kf[None, :, :], L2)[:, :, :L]
        y = (lambda x, *d: x.permute(*d))(y, 0, 2, 1)
        return y + u * D_skip[None, None, :]

    a = _A_ref(A_x, A_wqkv, A_w_phi, A_wo)
    b = _B_ref(B_u, B_log_A_real, B_A_imag, B_C_real, B_C_imag, B_log_dt, B_D_skip)
    return torch.concatenate([a, b], axis=-1)
```

```python
import re

def v(i, n=1): return f"v{i}" if n == 1 else f"v[{i}:{i+n-1}]"
def a(i, n=1): return f"a{i}" if n == 1 else f"a[{i}:{i+n-1}]"
def s(i, n=1): return f"s{i}" if n == 1 else f"s[{i}:{i+n-1}]"

class Asm:
    def __init__(self):
        self.L = []
    def __call__(self, txt):
        for ln in txt.strip('\n').split('\n'):
            ln = ln.strip()
            if ln: self.L.append(ln)
    def label(self, n): self.L.append(n + ':')
    def c(self, t): self.L.append('; ' + t)
    def extend(self, other): self.L.extend(other.L if isinstance(other, Asm) else other)

_reg = re.compile(r'\b([vas])(\d+)\b|\b([vas])\[(\d+):(\d+)\]')
def regs_of(op):
    out = set()
    for m in _reg.finditer(op):
        if m.group(1): out.add((m.group(1), int(m.group(2))))
        else:
            for i in range(int(m.group(4)), int(m.group(5))+1): out.add((m.group(3), i))
    if re.search(r'\bvcc\b', op): out |= {('s', 'vcc')}
    if re.search(r'\bvcc_lo\b|\bvcc_hi\b', op): out |= {('s', 'vcc')}
    if re.search(r'\bm0\b', op): out |= {('s', 'm0')}
    if re.search(r'\bexec\b|\bexec_lo\b|\bexec_hi\b', op): out |= {('s', 'exec')}
    return out

TRANS = ('v_exp_f32', 'v_log_f32', 'v_rcp_f32', 'v_rsq_f32', 'v_sqrt_f32', 'v_sin_f32', 'v_cos_f32', 'v_rcp_iflag_f32')
class I:
    __slots__ = ('txt','op','ops','w','r','kind','passes','srcc','ab','dpp','states','stdata','lds_dma','sdwa_opsel')
    def __init__(self, txt):
        self.txt = txt
        t = txt.split(';')[0].strip()
        p = t.split(None, 1)
        self.op = op = p[0]
        rest = p[1] if len(p) > 1 else ''
        ops = []; depth = 0; cur = ''
        for ch in rest:
            if ch == '[': depth += 1
            if ch == ']': depth -= 1
            if ch == ',' and depth == 0: ops.append(cur.strip()); cur = ''
            else: cur += ch
        if cur.strip(): ops.append(cur.strip())
        self.ops = ops
        self.w = set(); self.r = set(); self.passes = 0; self.srcc = set(); self.ab = set()
        self.dpp = ('_dpp' in op) or bool(re.search(r'\b(quad_perm|row_shr|row_shl|row_ror|wave_shr|wave_shl|wave_ror|wave_rol|row_bcast|row_mirror|row_half_mirror|row_newbcast)', t))
        self.states = 1; self.stdata = set(); self.lds_dma = False
        self.sdwa_opsel = False
        base = re.sub(r'_(e32|e64|dpp|sdwa)$', '', op)
        R = [regs_of(o) for o in ops]
        allr = set().union(*R) if R else set()
        if op == 's_nop':
            self.kind = 'nop'; self.states = int(ops[0], 0) + 1
        elif op.startswith('v_mfma'):
            self.kind = 'mfma'
            self.passes = 8 if '32x32' in op else 4
            if '32x32x2_f32' in op: self.passes = 16
            self.w = R[0]; self.ab = R[1] | R[2]; self.srcc = R[3]; self.r = self.ab | self.srcc
        elif op.startswith('v_'):
            self.kind = 'trans' if base in TRANS else 'valu'
            if base.startswith('v_cmpx'):
                self.w = R[0] | {('s', 'exec')}; self.r = set().union(*R[1:])
            elif base.startswith('v_permlane') and 'swap' in base:
                self.w = R[0] | R[1]; self.r = R[0] | R[1]
            elif base in ('v_swap_b32',):
                self.w = R[0] | R[1]; self.r = R[0] | R[1]
            elif base in ('v_add_co_u32', 'v_sub_co_u32', 'v_addc_co_u32', 'v_subb_co_u32', 'v_subrev_co_u32', 'v_div_scale_f32', 'v_mad_u64_u32'):
                self.w = R[0] | R[1]; self.r = set().union(*R[2:])
            else:
                self.w = R[0]; self.r = set().union(*R[1:]) if len(R) > 1 else set()
                if base in ('v_fmac_f32', 'v_pk_fmac_f16', 'v_writelane_b32', 'v_dot2c_f32_bf16') or self.dpp or '_sdwa' in op:
                    self.r |= R[0]
            if '_sdwa' in op and 'dst_sel' in t and 'dst_sel:DWORD' not in t: self.sdwa_opsel = True
        elif op.startswith('ds_'):
            self.kind = 'ds'
            if op.startswith('ds_read') or 'permute' in op or 'swizzle' in op or '_rtn' in op:
                self.w = R[0]; self.r = set().union(*R[1:]) if len(R) > 1 else set()
                if 'd16' in op: self.r |= R[0]
            else:
                self.r = allr
            if 'addtid' in op: self.r |= {('s', 'm0')}
        elif op.startswith('buffer_') or op.startswith('global_'):
            self.kind = 'vmem'
            islds = bool(re.search(r'\blds\b', t)) or '_lds_' in op
            if op in ('buffer_wbl2', 'buffer_inv'):
                pass
            elif islds:
                self.lds_dma = True; self.r = allr | {('s', 'm0')}
            elif '_load' in op:
                self.w = R[0]; self.r = set().union(*R[1:])
                if 'd16' in op: self.r |= R[0]
            elif 'atomic' in op:
                self.r = allr
                if re.search(r'\bsc0\b', t): self.w = R[0]
            else:
                self.r = allr
                if 'x4' in op or 'x3' in op:
                    self.stdata = R[0] if op.startswith('buffer_') else R[1]
        elif op.startswith('s_'):
            self.kind = 'salu'
            if op.startswith('s_load') or op.startswith('s_buffer_load') or op in ('s_memtime', 's_memrealtime'):
                self.kind = 'smem'; self.w = R[0]; self.r = set().union(*R[1:]) if len(R) > 1 else set()
            elif op.startswith('s_cmp') or op.startswith('s_cbranch') or op.startswith('s_bitcmp') or op in ('s_waitcnt', 's_barrier', 's_branch', 's_endpgm', 's_setprio', 's_sleep', 's_setreg_imm32_b32', 's_setpc_b64'):
                self.r = allr
            else:
                self.w = R[0] if R else set(); self.r = set().union(*R[1:]) if len(R) > 1 else set()
                if 'saveexec' in op: self.w = self.w | {('s', 'exec')}
                if op.startswith('s_cmov'): self.r = self.r | self.w
        else:
            raise ValueError('unknown instr ' + txt)

def vg(x): return {r for r in x if r[0] in 'va'}
def sg(x): return {r for r in x if r[0] == 's'}

def need(p, c):
    n = 0
    isvalu = lambda i: i.kind in ('valu', 'trans')
    if isvalu(p):
        pw = vg(p.w); ps = sg(p.w)
        if c.kind == 'mfma' and pw & c.r: n = max(n, 2)
        if isvalu(c):
            if c.dpp and pw & c.r: n = max(n, 2)
            if c.op.startswith('v_permlane') and pw & c.r: n = max(n, 2)
            if (c.op.startswith('v_readlane') or c.op.startswith('v_readfirstlane')) and pw & c.r: n = max(n, 1)
            if p.kind == 'trans' and pw & c.r: n = max(n, 1)
            if p.sdwa_opsel and pw & (c.r | c.w): n = max(n, 1)
            if ps & c.r:
                n = max(n, 4 if (c.op.startswith('v_readlane') or c.op.startswith('v_writelane') or c.op.startswith('v_div_fmas')) else 2)
            if ('s', 'exec') in ps:
                if c.dpp: n = max(n, 5)
                if c.op.startswith('v_read') or c.op.startswith('v_writelane') or c.op.startswith('v_permlane'): n = max(n, 4)
        if c.kind == 'mfma' and ('s', 'exec') in ps: n = max(n, 4)
        if p.kind == 'trans' and c.kind in ('mfma', 'vmem', 'ds') and pw & c.r: n = max(n, 2 if c.kind == 'mfma' else 1)
        if c.kind == 'vmem' and ps & c.r: n = max(n, 5)
        if c.kind in ('salu', 'smem') and ps & c.r: n = max(n, 1)
    if p.kind == 'salu' and ('s', 'm0') in p.w and (c.lds_dma or (c.kind == 'ds' and 'addtid' in c.op)): n = max(n, 1)
    if p.kind == 'vmem' and p.stdata:
        if isvalu(c) and p.stdata & c.w: n = max(n, 2)
        elif c.w & p.stdata: n = max(n, 1)
    if p.kind == 'mfma':
        idx = {2: 0, 4: 1, 8: 2, 16: 3}[p.passes]
        if c.kind == 'mfma':
            if p.w & c.ab: n = max(n, (5, 8, 12, 20)[idx])
            if p.w & c.srcc:
                if not (p.w == c.srcc and p.passes == c.passes): n = max(n, (4, 6, 10, 18)[idx])
            elif p.w & c.w: n = max(n, (5, 8, 12, 20)[idx])
        elif c.kind in ('valu', 'trans', 'vmem', 'ds'):
            if p.w & (c.r | c.w): n = max(n, (5, 8, 12, 20)[idx])
        if isvalu(c) and p.srcc & c.w: n = max(n, (1, 3, 7, 15)[idx])
    return n

def fix_hazards(lines, verbose=False):
    items = []
    for ln in lines:
        t = ln.split(';')[0].strip()
        if not t or t.startswith('.') and not t.endswith(':'):
            items.append(('x', ln))
        elif t.endswith(':'):
            items.append(('l', t[:-1]))
        else:
            items.append(('i', I(ln)))
    inserted = 0
    changed = True
    while changed:
        changed = False
        srcs = {}
        for idx, (k, o) in enumerate(items):
            if k == 'i' and (o.op.startswith('s_cbranch') or o.op == 's_branch'):
                srcs.setdefault(o.ops[0], []).append(idx)
        idx = 0
        while idx < len(items):
            k, c = items[idx]
            if k != 'i' or c.kind == 'nop':
                idx += 1; continue
            worst = 0
            stack = [(idx - 1, 0)]; seen = set()
            while stack:
                j, d = stack.pop()
                while j >= 0 and d < 20:
                    if (j, d) in seen: break
                    seen.add((j, d))
                    kk, p = items[j]
                    if kk == 'l':
                        for sidx in srcs.get(p, []): stack.append((sidx, d))
                        jj = j - 1
                        while jj >= 0 and items[jj][0] == 'x': jj -= 1
                        if jj >= 0 and items[jj][0] == 'i' and items[jj][1].op in ('s_branch', 's_endpgm', 's_setpc_b64'): break
                    elif kk == 'i':
                        nd = need(p, c)
                        if nd - d > worst: worst = nd - d
                        d += p.states
                    j -= 1
            if worst > 0:
                if verbose: print('nop', worst, 'before', c.txt)
                while worst > 0:
                    n = min(worst, 16)
                    items.insert(idx, ('i', I(f's_nop {n-1}')))
                    for lst in srcs.values():
                        for q in range(len(lst)):
                            if lst[q] >= idx: lst[q] += 1
                    idx += 1; worst -= n; inserted += n
                changed = True
            idx += 1
    out = []
    for k, o in items:
        out.append(o.txt if k == 'i' else (o + ':' if k == 'l' else o))
    return out, inserted


def check_waits(lines):
    items = []
    for ln in lines:
        t = ln.split(';')[0].strip()
        if not t or (t.startswith('.') and not t.endswith(':')): continue
        if t.endswith(':'): items.append(('l', t[:-1]))
        else: items.append(('i', I(ln)))
    lab = {o: i for i, (k, o) in enumerate(items) if k == 'l'}
    probs = []
    start = (0, (), ())
    stack = [start]; seen = set()
    ent = [i for i, (k, o) in enumerate(items) if k == 'l' and o.endswith('_kernel')]
    stack = [(i, (), ()) for i in ent] or [start]
    while stack:
        pc, vm, lg = stack.pop()
        vm = list(vm); lg = list(lg)
        while pc < len(items):
            k, o = items[pc]
            if k == 'l':
                key = (pc, tuple(vm), tuple(lg))
                if key in seen: break
                seen.add(key)
                pc += 1; continue
            if o.op == 's_waitcnt':
                m = re.search(r'vmcnt\((\d+)\)', o.txt)
                if m:
                    n = int(m.group(1)); vm = vm[len(vm)-n:] if n < len(vm) and n > 0 else ([] if n == 0 else vm)
                m = re.search(r'lgkmcnt\((\d+)\)', o.txt)
                if m:
                    n = int(m.group(1))
                    if n == 0: lg = []
                    elif not any(x[0] == 'smem' for x in lg) and n < len(lg): lg = lg[len(lg)-n:]
                pc += 1; continue
            touched = o.r | o.w
            for w in vm:
                if w & touched: probs.append(('vm', o.txt))
            for kind, w in lg:
                if w & touched and not (o.kind == 'ds' and kind == 'ds' and not (w & o.r)): probs.append(('lgkm', o.txt))
            if o.kind == 'vmem':
                vm.append(frozenset(o.w))
                if len(vm) > 63: vm = vm[1:]
            elif o.kind == 'ds':
                lg.append(('ds', frozenset(o.w)))
                if len(lg) > 40: lg = lg[1:]
            elif o.kind == 'smem':
                lg.append(('smem', frozenset(o.w)))
                if len(lg) > 40: lg = lg[1:]
            if o.op == 's_endpgm': break
            if o.op == 's_branch':
                pc = lab[o.ops[0]]; continue
            if o.op.startswith('s_cbranch'):
                stack.append((lab[o.ops[0]], tuple(vm), tuple(lg)))
            pc += 1
    return sorted(set(probs))
```

```python
from asmlib import *
WS_SIZE = 268435456
WS_UT = 0
WS_YT = 4<<20
WS_O = 8<<20
WS_P1 = 12<<20
WS_P2 = 16<<20
WS_Z = (16<<20) + (512<<10)
WS_UF = 17<<20
WS_KF1 = WS_UF + 16384
WS_KF2 = WS_UF + 32768
WS_ST = 18<<20
SPIN_MAX = 1 << 20

def srd(A, d, p, n):
    A(f"s_mov_b32 {s(d)}, {s(p)}\ns_mov_b32 {s(d+1)}, {s(p+1)}\ns_mov_b32 {s(d+2)}, {n}\ns_mov_b32 {s(d+3)}, 0x20000")

def get_nonce(A, tag, vn, vz, sdbg, scnt):
    A(f"s_mov_b32 {s(scnt)}, 0")
    A.label(f'{tag}_non')
    A(f"""v_cmp_ne_u64 vcc, 0, {v(vn,2)}
    s_add_u32 {s(scnt)}, {s(scnt)}, 1
    s_nop 3
    s_cbranch_vccnz {tag}_nonok
    s_cmp_gt_u32 {s(scnt)}, {SPIN_MAX}
    s_cbranch_scc1 {tag}_nonok
    global_load_dwordx2 {v(vn,2)}, {v(vz)}, {s(sdbg,2)} sc1
    s_waitcnt vmcnt(0)
    s_branch {tag}_non""")
    A.label(f'{tag}_nonok')

def poll(A, tag, voff, srdr, soff, vn, vt, scnt):
    A(f"s_mov_b32 {s(scnt)}, 0")
    A.label(f'{tag}_poll')
    A(f"""buffer_load_dwordx2 {v(vt,2)}, {v(voff)}, {s(srdr,4)}, {s(soff)} offen sc1
    s_add_u32 {s(scnt)}, {s(scnt)}, 1
    s_cmp_gt_u32 {s(scnt)}, {SPIN_MAX}
    s_cbranch_scc1 {tag}_pollok
    s_waitcnt vmcnt(0)
    v_cmp_ne_u64 vcc, {v(vt,2)}, {v(vn,2)}
    s_nop 4
    s_cbranch_vccnz {tag}_poll""")
    A.label(f'{tag}_pollok')
    A("s_waitcnt vmcnt(0)")

def stamp(A, opt, i):
    if opt.get('stamps'):
        A(f"s_memrealtime {s(80+2*i,2)}\ns_waitcnt lgkmcnt(0)")
def stamp_end(A, opt, srdr, role):
    if not opt.get('stamps'): return
    A("s_waitcnt vmcnt(0)\ns_memrealtime s[94:95]\ns_waitcnt lgkmcnt(0)")
    for i in range(8): A(f"v_mov_b32 {v(8+i)}, {s(80+2*i)}")
    A(f"""v_lshrrev_b32 v2, 6, v0
    v_lshlrev_b32 v2, 5, v2
    s_lshl_b32 s80, s2, 8
    s_add_u32 s80, s80, {WS_ST + role*65536}
    s_mov_b64 exec, 1
    buffer_store_dwordx4 v[8:11], v2, {s(srdr,4)}, s80 offen
    buffer_store_dwordx4 v[12:15], v2, {s(srdr,4)}, s80 offen offset:16
    s_waitcnt vmcnt(0)""")
```

```python
from asmlib import *

WSLOT, XBASE, XSLOT = 12288, 49152, 16384
class GR:
    acc = 0
def gemm_mainloop(A, R, opt):
    acc = R['acc']; XF = R['xf']; WF = R['wf']
    vxa = R['vxa']
    vwa = R['vwa']
    vxr = R['vxr']
    vwr = R['vwr']
    sx, sw = R['srdx'], R['srdw']
    sxo, swo = R['sxo'], R['swo']
    sxc, swc = R['sxc'], R['swc']
    smx, smw = R['smx'], R['smw']
    sk0 = R['sk0']; st = R['st']; sit = R['sit']
    def dma_x(slot):
        g = [[f"s_add_u32 m0, {s(smx)}, {XBASE + slot*XSLOT}",
              f"s_add_u32 {s(st)}, {s(sxc)}, {s(sk0)}", f"s_and_b32 {s(st)}, {s(st)}, 15", f"s_lshl_b32 {s(st)}, {s(st)}, 7",
              f"s_cmp_lt_u32 {s(sxc)}, 16", f"s_cselect_b32 {s(sxo)}, {s(st)}, 0x7000000", f"s_add_u32 {s(sxc)}, {s(sxc)}, 1"]]
        for i in range(4):
            ins = f"buffer_load_dwordx4 {v(vxa+i)}, {s(sx,4)}, {s(sxo)} offen offset:{i*1024} lds"
            if i == 0: g[0].append(ins)
            else: g.append([ins])
        return g
    def dma_w(slot):
        g = [[f"s_add_u32 m0, {s(smw)}, {slot*WSLOT}",
              f"s_lshl_b32 {s(st)}, {s(sk0)}, 1", f"s_add_u32 {s(st)}, {s(st)}, {s(swc)}", f"s_and_b32 {s(st)}, {s(st)}, 31", f"s_mul_i32 {s(st)}, {s(st)}, {32*6144}",
              f"s_cmp_lt_u32 {s(swc)}, 32", f"s_cselect_b32 {s(swo)}, {s(st)}, 0x7000000", f"s_add_u32 {s(swc)}, {s(swc)}, 1"]]
        for p in range(3):
            ins = f"buffer_load_dwordx4 {v(vwa+p)}, {s(sw,4)}, {s(swo)} offen offset:{p*1024} lds"
            if p == 0: g[0].append(ins)
            else: g.append([ins])
        return g
    def rd_x(slot, ks):
        return [f"ds_read_b128 {v(XF+ks*8+4*j,4)}, {v(vxr+ks)} offset:{slot*XSLOT + j*4096}" for j in range(2)]
    def rd_w(slot, ks, buf):
        o = []
        for p in range(3):
            for j in range(2):
                o.append(f"ds_read_b64_tr_b16 {v(WF+buf*12+p*4+2*j,2)}, {v(vwr)} offset:{slot*WSLOT + ks*6144 + p*1024 + j*512}")
        return o
    def mf(ks, buf):
        o = []
        for p in range(3):
            for j in range(2):
                c = v(acc + (p*2+j)*16, 16); x = v(XF+ks*8+4*j, 4); w = v(WF+buf*12+p*4, 4)
                o.append(f"v_mfma_f32_32x32x16_bf16 {c}, {w}, {x}, {c}" if p < 2 else f"v_mfma_f32_32x32x16_bf16 {c}, {x}, {w}, {c}")
        return o
    OPT.clear(); OPT.update(opt)
    A(f"s_mov_b32 {s(sxc)}, 0\ns_mov_b32 {s(swc)}, 0\ns_mov_b32 {s(sit)}, 0")
    for g in dma_x(0) + dma_w(0) + dma_w(1) + dma_x(1) + dma_w(2):
        for ins in g: A(ins)
    for i in range(96): A(f"v_mov_b32 {v(acc+i)}, 0")
    if 'after_issue' in opt: opt['after_issue'](A)
    A("s_waitcnt vmcnt(10)\ns_barrier")
    for g in dma_w(3):
        for ins in g: A(ins)
    for ins in rd_x(0, 0) + rd_w(0, 0, 0): A(ins)
    if 'at_loop' in opt: opt['at_loop'](A)
    A.label('G_loop')
    for cc in range(2):
        xs = cc
        for half in range(2):
            n = cc*2 + half
            reads = rd_w(n, 1, 1)
            if half == 0: reads = rd_x(xs, 1) + reads + rd_x(xs, 2) + rd_x(xs, 3)
            pend = R.setdefault('_pend', [])
            emit_step(A, mf(2*half, 0), reads, [g for g in pend], first_wait=True)
            R['_pend'] = []
            A("s_waitcnt vmcnt(10) lgkmcnt(0)")
            if not opt.get('nobar'): A("s_barrier")
            nn = (n+1) % 4
            reads = rd_w(nn, 0, 0)
            if half == 1: reads = rd_x(1-xs, 0) + reads
            d = (dma_x(xs) if half == 0 else []) + dma_w(n)
            k1 = opt.get('split', 4)
            emit_step(A, mf(2*half+1, 1), reads, d[:k1] if half == 0 else d, first_wait=False)
            R['_pend'] = d[k1:] if half == 0 else []
    A(f"s_add_u32 {s(sit)}, {s(sit)}, 1\ns_cmp_lt_u32 {s(sit)}, 8\ns_cbranch_scc1 G_loop")
    A("s_waitcnt vmcnt(0) lgkmcnt(0)")

OPT = {}
def emit_step(A, mfs, reads, dmas, first_wait):
    if first_wait: A("s_waitcnt lgkmcnt(0)")
    if OPT.get('nodma'): dmas = []
    if OPT.get('noread'): reads = []
    if OPT.get('nomfma'): mfs = ['s_nop 0']*len(mfs)
    nr = len(reads); slots = len(mfs)
    rg = OPT.get('rgaps', slots-1)
    ri = 0; di = 0
    for i, m in enumerate(mfs):
        A(m)
        tgt = min(nr, -(-nr*(i+1)//rg))
        while ri < tgt: A(reads[ri]); ri += 1
        d0 = OPT.get('dstart', 0)
        tgt = 0 if i < d0 else min(len(dmas), -(-len(dmas)*(i+1-d0)//(slots-d0)))
        while di < tgt:
            for ins in dmas[di]: A(ins)
            di += 1

def gemm_setup(A, R, opt):
    sx, sw = R['srdx'], R['srdw']
    A(f"""s_mov_b32 {s(sx)}, s4
    s_mov_b32 {s(sx+1)}, s5
    s_mov_b32 {s(sx+2)}, 4194304
    s_mov_b32 {s(sx+3)}, 0x20000
    s_mov_b32 {s(sw)}, s6
    s_mov_b32 {s(sw+1)}, s7
    s_mov_b32 {s(sw+2)}, 6291456
    s_mov_b32 {s(sw+3)}, 0x20000""")
    ln, t0, t1, t2 = R['vln'], R['vt'], R['vt']+1, R['vt']+2
    swv, st = R['swv'], R['st']
    A(f"""v_lshrrev_b32 {v(t0)}, 3, {v(ln)}
    v_and_b32 {v(t1)}, 7, {v(ln)}
    v_lshrrev_b32 {v(t2)}, 4, {v(ln)}
    v_xor_b32 {v(t2)}, {v(t1)}, {v(t2)}
    v_lshlrev_b32 {v(t2)}, 4, {v(t2)}
    v_lshl_add_u32 {v(t2)}, {v(t0)}, 11, {v(t2)}
    s_lshl_b32 {s(st)}, {s(R['srb'])}, 2
    s_add_u32 {s(st)}, {s(st)}, {s(swv)}
    s_lshl_b32 {s(st)}, {s(st)}, 16
    v_add_u32 {v(R['vxa'])}, {s(st)}, {v(t2)}
    v_xor_b32 {v(t2)}, 64, {v(R['vxa'])}
    v_add_u32 {v(R['vxa']+1)}, {16384-1024}, {v(t2)}
    v_add_u32 {v(R['vxa']+2)}, {2*(16384-1024)}, {v(R['vxa'])}
    v_add_u32 {v(R['vxa']+3)}, {3*(16384-1024)}, {v(t2)}
    s_lshl_b32 {s(R['smx'])}, {s(swv)}, 12""")
    A(f"""v_lshlrev_b32 {v(t2)}, 1, {v(t0)}
    v_and_b32 {v(t2)}, 4, {v(t2)}
    v_xor_b32 {v(t2)}, {v(t1)}, {v(t2)}
    v_lshlrev_b32 {v(t2)}, 4, {v(t2)}
    v_mul_u32_u24 {v(t0)}, 6144, {v(t0)}
    v_add_u32 {v(t2)}, {v(t0)}, {v(t2)}
    s_mul_i32 {s(st)}, {s(swv)}, {8*6144}
    s_lshl_b32 {s(st+1)}, {s(R['shp'])}, 7
    s_add_u32 {s(st)}, {s(st)}, {s(st+1)}
    v_add_u32 {v(R['vwa'])}, {s(st)}, {v(t2)}
    v_add_u32 {v(R['vwa']+1)}, 1024, {v(R['vwa'])}
    v_add_u32 {v(R['vwa']+2)}, 2048, {v(R['vwa'])}
    s_mul_i32 {s(R['smw'])}, {s(swv)}, 3072""")
    A(f"""v_and_b32 {v(t0)}, 31, {v(ln)}
    v_lshrrev_b32 {v(t1)}, 5, {v(ln)}
    v_bfe_u32 {v(t2)}, {v(ln)}, 1, 3
    v_xor_b32 {v(t2)}, {v(t1)}, {v(t2)}
    v_lshlrev_b32 {v(t2)}, 4, {v(t2)}
    v_lshl_add_u32 {v(t2)}, {v(t0)}, 7, {v(t2)}
    s_and_b32 {s(st)}, {s(swv)}, 1
    s_lshl_b32 {s(st)}, {s(st)}, 13
    s_add_u32 {s(st)}, {s(st)}, {XBASE}
    v_add_u32 {v(R['vxr'])}, {s(st)}, {v(t2)}
    v_xor_b32 {v(R['vxr']+1)}, 32, {v(R['vxr'])}
    v_xor_b32 {v(R['vxr']+2)}, 64, {v(R['vxr'])}
    v_xor_b32 {v(R['vxr']+3)}, 96, {v(R['vxr'])}""")
    A(f"""v_mul_u32_u24 {v(t1)}, 3072, {v(t1)}
    v_bfe_u32 {v(t0)}, {v(ln)}, 2, 2
    v_lshl_add_u32 {v(t1)}, {v(t0)}, 7, {v(t1)}
    v_lshrrev_b32 {v(t0)}, 1, {v(t0)}
    s_lshr_b32 {s(st)}, {s(swv)}, 1
    v_xor_b32 {v(t0)}, {s(st)}, {v(t0)}
    v_lshl_add_u32 {v(t1)}, {v(t0)}, 6, {v(t1)}
    v_bfe_u32 {v(t0)}, {v(ln)}, 4, 1
    v_lshl_add_u32 {v(t1)}, {v(t0)}, 5, {v(t1)}
    v_and_b32 {v(t0)}, 3, {v(ln)}
    v_lshl_add_u32 {v(R['vwr'])}, {v(t0)}, 3, {v(t1)}""")
```

```python
from asmlib import *
from common import *

YB = 131072
K2_LDS = 131072 + 8*2080 + 64
def kernel2(A, opt):
    WV, T = 28, 32
    SO, SW, SOUT = 8, 12, 16
    RB, NB = 26, 27
    A("s_cmp_ge_u32 s2, 256\ns_cbranch_scc1 K2_end")
    stamp(A, opt, 0)
    A("""s_load_dwordx2 s[4:5], s[0:1], 24
    s_load_dwordx2 s[6:7], s[0:1], 88
    s_load_dwordx2 s[54:55], s[0:1], 104
    v_lshrrev_b32 v2, 6, v0
    v_and_b32 v1, 63, v0
    v_readfirstlane_b32 s28, v2
    s_and_b32 s24, s2, 7
    s_lshr_b32 s25, s2, 3""")
    A(f"""s_and_b32 s29, s24, 1
    s_lshl_b32 s29, s29, 1
    s_bfe_u32 s30, s24, 0x10001
    s_add_u32 s29, s29, s30
    s_lshl_b32 {s(RB)}, s29, 2
    s_and_b32 s29, s25, 3
    s_add_u32 {s(RB)}, {s(RB)}, s29
    s_lshr_b32 {s(NB)}, s24, 2
    s_lshl_b32 {s(NB)}, {s(NB)}, 3
    s_lshr_b32 s30, s25, 2
    s_add_u32 {s(NB)}, {s(NB)}, s30
    s_waitcnt lgkmcnt(0)""")
    srd(A, SO, 54, WS_SIZE); srd(A, SW, 4, 2097152); srd(A, SOUT, 6, 8388608)
    A(f"""v_lshrrev_b32 v4, 3, v1
    v_and_b32 v5, 7, v1
    v_lshlrev_b32 v6, 1, v4
    v_and_b32 v6, 4, v6
    v_xor_b32 v5, v5, v6
    v_lshlrev_b32 v5, 4, v5
    v_lshl_add_u32 v4, v4, 11, v5
    s_lshl_b32 {s(T)}, {s(WV)}, 15
    s_lshl_b32 {s(T+1)}, {s(NB)}, 7
    s_add_u32 {s(T)}, {s(T)}, {s(T+1)}
    v_add_u32 v2, {s(T)}, v4
    v_add_u32 v3, {16384-1024}, v2
    v_lshlrev_b32 v4, 4, v1
    s_lshl_b32 {s(T)}, {s(RB)}, 2
    s_add_u32 {s(T)}, {s(T)}, {s(WV)}
    s_lshl_b32 {s(T)}, {s(T)}, 16
    s_add_u32 s20, {s(T)}, {WS_O}
    s_mov_b32 s21, 0
    s_lshl_b32 s22, {s(WV)}, 11""")
    OF = 64; D = opt.get('k2d', 4)
    def issue(slot):
        o = [["s_mov_b32 m0, s22", "s_add_u32 s22, s22, 8192", f"buffer_load_dwordx4 v2, {s(SW,4)}, s21 offen lds"],
             [f"buffer_load_dwordx4 v3, {s(SW,4)}, s21 offen offset:1024 lds", "s_add_u32 s21, s21, 131072"]]
        for i in range(4):
            o.append([f"buffer_load_dwordx4 {v(OF+16*slot+4*i,4)}, v4, {s(SO,4)}, s20 offen offset:{i*1024}"])
        o[-1].append("s_add_u32 s20, s20, 4096")
        return o
    for c in range(D):
        for g in issue(c):
            for ins in g: A(ins)
    A(f"""v_lshrrev_b32 v8, 5, v1
    v_bfe_u32 v9, v1, 2, 2
    v_lshl_add_u32 v8, v8, 2, v9
    v_lshlrev_b32 v8, 7, v8
    v_lshrrev_b32 v9, 1, v9
    v_lshl_add_u32 v8, v9, 6, v8
    v_bfe_u32 v9, v1, 4, 1
    v_lshl_add_u32 v8, v9, 5, v8
    v_and_b32 v9, 3, v1
    v_lshl_add_u32 v6, v9, 3, v8
    v_xor_b32 v7, 64, v6""")
    ACC = 32; WF = 16
    for i in range(32): A(f"v_mov_b32 {v(ACC+i)}, 0")
    NS = D + 1
    WFB = (192, 224)
    def reads(c):
        o = []
        for ks in range(4):
            for nt in range(2):
                for j in range(2):
                    o.append(f"ds_read_b64_tr_b16 {v(WFB[c&1]+8*ks+4*nt+2*j,2)}, {v(6+nt)} offset:{(c&7)*8192 + ks*2048 + j*1024}")
        return o
    outstanding = D
    A(f"s_waitcnt vmcnt({6*(D-1)+4})\ns_barrier")
    for n, ins in enumerate(reads(0)):
        A(ins)
        if n == 11: A("s_waitcnt lgkmcnt(8)")
    stamp(A, opt, 1)
    for c in range(16):
        iss = min(16, c + D)
        if c < 15:
            A(f"s_waitcnt vmcnt({6*(iss-c-2)+4}) lgkmcnt(0)\ns_barrier")
        else:
            A("s_waitcnt vmcnt(4) lgkmcnt(0)")
        if c == 7: A("v_add_u32 v6, 65536, v6\nv_add_u32 v7, 65536, v7")
        rd = reads(c+1) if c < 15 else []
        dm = issue((c + D) % NS) if c + D < 16 else []
        if c == 14:
            dm = [[f"s_lshl_b32 {s(T)}, s2, 14", f"s_lshl_b32 {s(T+1)}, {s(WV)}, 12", f"s_add_u32 {s(T)}, {s(T)}, {s(T+1)}",
                   f"s_add_u32 {s(T)}, {s(T)}, {WS_YT}", f"s_mul_i32 {s(T+1)}, {s(WV)}, 4160", f"s_add_u32 m0, {s(T+1)}, {YB}",
                   f"s_add_u32 {s(T+1)}, {s(T+1)}, {YB+32}",
                   f"buffer_load_dwordx4 v4, {s(SO,4)}, {s(T)} offen lds"],
                  [f"buffer_load_dwordx4 v4, {s(SO,4)}, {s(T)} offen offset:1024 lds"],
                  [f"s_mov_b32 m0, {s(T+1)}", f"buffer_load_dwordx4 v4, {s(SO,4)}, {s(T)} offen offset:2048 lds"],
                  [f"buffer_load_dwordx4 v4, {s(SO,4)}, {s(T)} offen offset:3072 lds"]]
        k = 0
        for ks in range(4):
            for nt in range(2):
                cc = v(ACC+16*nt, 16)
                A(f"v_mfma_f32_32x32x16_bf16 {cc}, {v(WFB[c&1]+8*ks+4*nt,4)}, {v(OF+16*(c%NS)+4*ks,4)}, {cc}")
                for ins in rd[3*k:3*k+3] if k < 5 else rd[15+(k-5):16+(k-5)]: A(ins)
                if k == 4 and rd: A("s_waitcnt lgkmcnt(12)")
                if k < len(dm):
                    for ins in dm[k]: A(ins)
                k += 1
    stamp(A, opt, 2)
    A(f"""v_and_b32 v8, 31, v1
    v_lshrrev_b32 v9, 5, v1
    v_and_b32 v10, 7, v1
    v_lshlrev_b32 v10, 4, v10
    v_lshl_add_u32 v10, v9, 3, v10
    v_lshl_add_u32 v10, v8, 7, v10
    s_lshl_b32 {s(T)}, {s(WV)}, 12
    v_add_u32 v10, {s(T)}, v10
    v_lshrrev_b32 v8, 3, v1
    v_and_b32 v9, 7, v1
    v_xor_b32 v11, v8, v9
    v_lshlrev_b32 v11, 4, v11
    v_lshl_add_u32 v11, v8, 7, v11
    v_add_u32 v11, {s(T)}, v11
    v_lshlrev_b32 v9, 4, v9
    v_lshl_add_u32 v12, v8, 12, v9
    s_lshl_b32 {s(T)}, {s(RB)}, 2
    s_add_u32 {s(T)}, {s(T)}, {s(WV)}
    s_lshl_b32 {s(T)}, {s(T)}, 17
    s_lshl_b32 {s(T+1)}, {s(NB)}, 7
    s_add_u32 {s(T)}, {s(T)}, {s(T+1)}""")
    for u_ in range(8):
        A(f"""v_cvt_pk_bf16_f32 {v(16+2*u_)}, {v(ACC+4*u_)}, {v(ACC+4*u_+1)}
        v_cvt_pk_bf16_f32 {v(17+2*u_)}, {v(ACC+4*u_+2)}, {v(ACC+4*u_+3)}
        v_xor_b32 v13, {16*u_}, v10
        ds_write_b64 v13, {v(16+2*u_,2)}""")
    A("s_waitcnt lgkmcnt(0)")
    for i in range(4): A(f"ds_read_b128 {v(64+4*i,4)}, v11 offset:{i*1024}")
    A(f"""v_and_b32 v8, 7, v1
    v_mul_u32_u24 v13, 2080, v8
    v_lshrrev_b32 v9, 3, v1
    v_lshl_add_u32 v13, v9, 3, v13
    s_lshl_b32 {s(T+1)}, {s(WV)}, 6
    s_add_u32 {s(T+1)}, {s(T+1)}, {YB}
    v_add_u32 v13, {s(T+1)}, v13
    v_and_b32 v9, 1, v9
    v_lshlrev_b32 v9, 20, v9
    v_lshrrev_b32 v14, 4, v1
    v_lshl_add_u32 v9, v14, 12, v9
    v_lshl_add_u32 v14, v8, 4, v9
    s_waitcnt vmcnt(0)
    s_barrier""")
    for c in range(8): A(f"ds_read_b64 {v(96+2*c,2)}, v13 offset:{c*256}")
    for i in range(4):
        A(f"s_waitcnt lgkmcnt({8+3-i})\nbuffer_store_dwordx4 {v(64+4*i,4)}, v12, {s(SOUT,4)}, {s(T)} offen")
        if i < 3: A(f"s_add_u32 {s(T)}, {s(T)}, 32768")
    A(f"""s_lshr_b32 {s(T)}, s2, 4
    s_lshl_b32 {s(T)}, {s(T)}, 7
    s_bfe_u32 {s(T+1)}, s2, 0x20002
    s_lshl_b32 {s(T+1)}, {s(T+1)}, 21
    s_add_u32 {s(T)}, {s(T)}, {s(T+1)}
    s_and_b32 {s(T+1)}, s2, 3
    s_lshl_b32 {s(T+1)}, {s(T+1)}, 2
    s_add_u32 {s(T+1)}, {s(T+1)}, {s(WV)}
    s_lshl_b32 {s(T+1)}, {s(T+1)}, 14
    s_add_u32 {s(T)}, {s(T)}, {s(T+1)}
    s_add_u32 {s(T)}, {s(T)}, 2048
    s_mov_b32 s40, 0x05040100
    s_mov_b32 s41, 0x07060302
    s_waitcnt lgkmcnt(0)""")
    for i in range(4):
        for cp in range(4):
            A(f"v_perm_b32 {v(112+4*i+cp)}, {v(96+4*cp+2+(i>>1))}, {v(96+4*cp+(i>>1))}, {s(40+(i&1))}")
        A(f"buffer_store_dwordx4 {v(112+4*i,4)}, v14, {s(SOUT,4)}, {s(T)} offen")
        if i < 3: A(f"s_add_u32 {s(T)}, {s(T)}, {64*4096}")
    stamp(A, opt, 3)
    stamp_end(A, opt, SO, 2)
    A.label('K2_end')
    A("s_endpgm")
```

```python
from asmlib import *
from common import *
from gemm1 import *
from ssm import interleave

LOG2E = 0x3fb8aa3b

def softmax_block(src, P, E, out, WP, t, SL):
    pre = [f"v_cvt_pk_bf16_f32 {v(out+i)}, {v(src+2*i)}, {v(src+2*i+1)}" for i in range(8)]
    mf = [f"v_mfma_f32_32x32x16_bf16 {v(P,16)}, {v(WP,4)}, {v(out,4)}, 0",
          f"v_mfma_f32_32x32x16_bf16 {v(P,16)}, {v(WP+4,4)}, {v(out+4,4)}, {v(P,16)}"]
    b = []
    mx, mn = t, t+2
    b.append(f"v_max3_f32 {v(mx)}, {v(P)}, {v(P+1)}, {v(P+2)}")
    b.append(f"v_min3_f32 {v(mn)}, {v(P)}, {v(P+1)}, {v(P+2)}")
    for i in range(3, 15, 2):
        b.append(f"v_max3_f32 {v(mx)}, {v(mx)}, {v(P+i)}, {v(P+i+1)}")
        b.append(f"v_min3_f32 {v(mn)}, {v(mn)}, {v(P+i)}, {v(P+i+1)}")
    b.append(f"v_max_f32 {v(mx)}, {v(mx)}, {v(P+15)}")
    b.append(f"v_min_f32 {v(mn)}, {v(mn)}, {v(P+15)}")
    b.append(f"v_mul_f32 {v(mx)}, 0xbfb8aa3b, {v(mx)}")
    b.append(f"v_mul_f32 {v(mn)}, {LOG2E}, {v(mn)}")
    b.append(f"v_permlane32_swap_b32 {v(mx)}, {v(mn)}")
    b.append(f"v_min_f32 {v(mx)}, {v(mx)}, {v(mn)}")
    b.append(f"v_mov_b32 {v(mn)}, {v(mx)}")
    b.append(f"v_permlane32_swap_b32 {v(mx)}, {v(mn)}")
    for i in range(0, 16, 2):
        b.append(f"v_pk_fma_f32 {v(E+i,2)}, {v(P+i,2)}, {s(SL,2)}, {v(mn,2)} op_sel_hi:[1,1,0] neg_lo:[1,0,0] neg_hi:[1,0,0]")
        b.append(f"v_pk_fma_f32 {v(P+i,2)}, {v(P+i,2)}, {s(SL,2)}, {v(mx,2)} op_sel_hi:[1,1,0]")
    sp, sm = t+4, t+6
    for i in range(0, 16, 2):
        b += [f"v_exp_f32 {v(P+i)}, {v(P+i)}", f"v_exp_f32 {v(P+i+1)}, {v(P+i+1)}",
              f"v_exp_f32 {v(E+i)}, {v(E+i)}", f"v_exp_f32 {v(E+i+1)}, {v(E+i+1)}"]
        if i == 4:
            b += [f"v_pk_add_f32 {v(sp,2)}, {v(P,2)}, {v(P+2,2)}", f"v_pk_add_f32 {v(sm,2)}, {v(E,2)}, {v(E+2,2)}"]
        elif i > 4:
            b += [f"v_pk_add_f32 {v(sp,2)}, {v(sp,2)}, {v(P+i-2,2)}", f"v_pk_add_f32 {v(sm,2)}, {v(sm,2)}, {v(E+i-2,2)}"]
    b += [f"v_pk_add_f32 {v(sp,2)}, {v(sp,2)}, {v(P+14,2)}", f"v_pk_add_f32 {v(sm,2)}, {v(sm,2)}, {v(E+14,2)}"]
    b += [f"v_add_f32 {v(sp)}, {v(sp)}, {v(sp+1)}", f"v_add_f32 {v(sm)}, {v(sm)}, {v(sm+1)}",
          f"v_permlane32_swap_b32 {v(sp)}, {v(sm)}",
          f"v_add_f32 {v(sp)}, {v(sp)}, {v(sm)}",
          f"v_rcp_f32 {v(sp)}, {v(sp)}",
          f"v_mov_b32 {v(sm)}, {v(sp)}",
          f"v_permlane32_swap_b32 {v(sp)}, {v(sm)}"]
    for i in range(0, 16, 2):
        b.append(f"v_pk_mul_f32 {v(P+i,2)}, {v(P+i,2)}, {v(sp,2)} op_sel_hi:[1,0]")
        b.append(f"v_pk_mul_f32 {v(E+i,2)}, {v(E+i,2)}, {v(sm,2)} op_sel_hi:[1,0]")
    for i in range(8):
        b.append(f"v_cvt_pk_bf16_f32 {v(out+i)}, {v(P+2*i)}, {v(P+2*i+1)}")
        b.append(f"v_cvt_pk_bf16_f32 {v(out+8+i)}, {v(E+2*i)}, {v(E+2*i+1)}")
    return pre, mf, b

def role_g(A, opt):
    R = dict(acc=64, xf=160, wf=192, vxa=2, vwa=6, vxr=9, vwr=13, vln=1, vt=14,
             srdx=8, srdw=12, sxo=16, swo=17, sxc=18, swc=19, smx=20, smw=21, sk0=22, st=24, sit=23, srb=26, shp=27, swv=28)
    RB, HP, WV, T = 26, 27, 28, 32
    SWS = 40; WP = 18; SL = 44
    A.label('G_entry')
    stamp(A, opt, 0)
    A("""s_load_dwordx4 s[4:7], s[0:1], 0
    s_load_dwordx2 s[36:37], s[0:1], 16
    s_load_dwordx4 s[52:55], s[0:1], 96
    s_memrealtime s[56:57]
    v_lshrrev_b32 v2, 6, v0
    v_and_b32 v1, 63, v0
    v_readfirstlane_b32 s28, v2
    s_and_b32 s24, s2, 7
    s_lshr_b32 s25, s2, 3
    s_and_b32 s26, s24, 1
    s_lshl_b32 s26, s26, 3
    s_and_b32 s29, s25, 7
    s_add_u32 s26, s26, s29
    s_lshr_b32 s27, s24, 1
    s_lshl_b32 s27, s27, 2
    s_lshr_b32 s30, s25, 3
    s_add_u32 s27, s27, s30""")
    rot = opt.get('rot', 0)
    if rot == 0: A("s_mov_b32 s22, 0")
    elif rot == 1: A("s_lshl_b32 s22, s30, 1\ns_add_u32 s22, s22, s29\ns_lshl_b32 s22, s22, 1\ns_and_b32 s22, s22, 15")
    elif rot == 4: A("s_add_u32 s22, s30, s29\ns_and_b32 s22, s22, 3\ns_lshl_b32 s22, s22, 2")
    if opt.get('prio'): A(f"s_setprio {opt['prio']}")
    A("s_waitcnt lgkmcnt(0)")
    A("""v_mov_b32 v26, 0
    s_add_u32 s24, s2, s28
    s_cmp_eq_u32 s24, 0
    s_cbranch_scc0 G_nononce
    s_or_b32 s57, s57, 0x40000000
    v_mov_b32 v28, s56
    v_mov_b32 v29, s57
    s_mov_b64 exec, 1
    global_store_dwordx2 v26, v[28:29], s[52:53] sc1
    s_mov_b64 exec, -1
    s_waitcnt vmcnt(0)""")
    A.label('G_nononce')
    gemm_setup(A, R, opt)
    srd(A, SWS, 54, WS_SIZE)
    srd(A, 48, 36, 65536)
    A(f"""s_lshr_b32 {s(T)}, {s(WV)}, 1
    s_lshl_b32 {s(T+1)}, {s(HP)}, 1
    s_add_u32 {s(T+2)}, {s(T)}, {s(T+1)}
    s_lshl_b32 {s(T)}, {s(T+2)}, 11
    v_lshlrev_b32 v30, 4, v1
    s_add_u32 m0, s21, {3*WSLOT}
    s_add_u32 {s(T+1)}, s21, {3*WSLOT}
    buffer_load_dwordx4 v30, s[48:51], {s(T)} offen lds
    buffer_load_dwordx4 v30, s[48:51], {s(T)} offen offset:1024 lds""")
    HEAD = T+2
    A(f"""v_lshrrev_b32 v14, 5, v1
    v_bfe_u32 v15, v1, 2, 2
    v_lshl_add_u32 v14, v14, 2, v15
    v_bfe_u32 v15, v1, 4, 1
    v_lshlrev_b32 v15, 5, v15
    v_lshl_add_u32 v14, v14, 6, v15
    v_and_b32 v15, 3, v1
    v_lshl_add_u32 v31, v15, 3, v14
    v_add_u32 v32, {s(T+1)}, v31""")
    def after_issue(A):
        A("s_waitcnt vmcnt(17)")
        for t in range(2):
            for j in range(2):
                A(f"ds_read_b64_tr_b16 {v(WP+4*t+2*j,2)}, v32 offset:{t*1024+j*512}")
        A("s_waitcnt lgkmcnt(0)")
    o2 = dict(opt); o2['after_issue'] = after_issue
    o2['at_loop'] = lambda A: stamp(A, opt, 1)
    gemm_mainloop(A, R, o2)
    stamp(A, opt, 2)
    A("global_load_dwordx2 v[28:29], v26, s[52:53] sc1")
    A(f"s_mov_b32 {s(SL)}, {LOG2E}\ns_mov_b32 {s(SL+1)}, {LOG2E}")
    Q0, Q1, K0, K1, V0, V1 = [64+16*i for i in range(6)]
    OUTK = (224, 240)
    b0 = softmax_block(K0, 160, 176, OUTK[0], WP, 34, SL)
    b1 = softmax_block(K1, 192, 208, OUTK[1], WP, 42, SL)
    for ins in b0[0] + b0[1] + b1[0] + b1[1]: A(ins)
    VB = 96
    for i in range(16): A(f"v_cvt_pk_bf16_f32 {v(VB+i)}, {v(V0+2*i)}, {v(V0+2*i+1)}")
    A("s_barrier")
    A(f"""s_lshl_b32 {s(T)}, {s(WV)}, 12
    s_add_u32 {s(T)}, {s(T)}, 32768
    v_add_u32 v50, {s(T)}, v30""")
    for i in range(4): A(f"ds_write_b128 v50, {v(VB+4*i,4)} offset:{i*1024}")
    for ins in interleave(b0[2], b1[2]): A(ins)
    A(f"""v_and_b32 v14, 31, v1
    v_lshrrev_b32 v15, 5, v1
    v_bfe_u32 v16, v1, 2, 3
    v_xor_b32 v15, v15, v16
    v_lshlrev_b32 v15, 3, v15
    v_lshl_add_u32 v15, v14, 6, v15
    s_lshr_b32 {s(T)}, {s(WV)}, 1
    s_lshl_b32 {s(T)}, {s(T)}, 14
    s_and_b32 {s(T+1)}, {s(WV)}, 1
    s_lshl_b32 {s(T+3)}, {s(T+1)}, 12
    s_add_u32 {s(T+3)}, {s(T+3)}, {s(T)}
    v_add_u32 v52, {s(T+3)}, v15
    v_xor_b32 v53, 16, v52
    v_xor_b32 v54, 32, v52
    v_xor_b32 v55, 48, v52""")
    for jj in range(2):
        for sg_ in range(2):
            for q in range(4):
                A(f"ds_write_b64 {v(52+q)}, {v(OUTK[jj]+8*sg_+2*q,2)} offset:{sg_*8192 + jj*2048}")
    A(f"""v_lshrrev_b32 v14, 5, v1
    v_lshlrev_b32 v14, 3, v14
    v_xor_b32 v14, v14, v31
    s_lshl_b32 {s(T+1)}, {s(T+1)}, 13
    s_add_u32 {s(T)}, {s(T)}, {s(T+1)}
    v_add_u32 v56, {s(T)}, v14
    v_xor_b32 v57, 16, v56
    v_xor_b32 v58, 32, v56
    v_xor_b32 v59, 48, v56
    s_and_b32 {s(T)}, {s(WV)}, 2
    s_lshl_b32 {s(T)}, {s(T)}, 12
    s_add_u32 {s(T)}, {s(T)}, 32768
    v_add_u32 v50, {s(T)}, v30
    v_mov_b32 v60, 0x3f803f80
    v_mov_b32 v61, 0x3f803f80
    v_mov_b32 v62, 0x3f803f80
    v_mov_b32 v63, 0x3f803f80
    s_waitcnt lgkmcnt(0)
    s_barrier""")
    TF, VF, KV, ZZ = 160, 192, 96, 112
    for st in range(8):
        blk, t = st >> 1, st & 1
        for j in range(2):
            A(f"ds_read_b64_tr_b16 {v(TF+4*st+2*j,2)}, {v(56+2*t+j)} offset:{blk*2048 + t*1024 + j*512}")
        A(f"ds_read_b128 {v(VF+4*st,4)}, v50 offset:{st*1024}")
        if st == 4: A("s_waitcnt lgkmcnt(6)")
    for st in range(8):
        if st >= 3: A(f"s_waitcnt lgkmcnt({3*(7-st)})")
        A(f"v_mfma_f32_32x32x16_bf16 {v(KV,16)}, {v(TF+4*st,4)}, {v(VF+4*st,4)}, {v(KV,16) if st else 0}")
        A(f"v_mfma_f32_32x32x16_bf16 {v(ZZ,16)}, v[60:63], {v(TF+4*st,4)}, {v(ZZ,16) if st else 0}")
    OUTQ = (224, 240)
    q0 = softmax_block(Q0, 160, 176, OUTQ[0], WP, 34, SL)
    q1 = softmax_block(Q1, 192, 208, OUTQ[1], WP, 42, SL)
    for ins in q0[0] + q1[0]: A(ins)
    A(f"""s_lshl_b32 {s(T)}, {s(HP)}, 4
    s_add_u32 {s(T)}, {s(T)}, {s(RB)}
    s_lshl_b32 {s(T)}, {s(T)}, 2
    s_add_u32 {s(T)}, {s(T)}, {s(WV)}
    s_lshl_b32 {s(T)}, {s(T)}, 12
    s_add_u32 {s(T)}, {s(T)}, {WS_P1}""")
    for i in range(4): A(f"buffer_store_dwordx4 {v(KV+4*i,4)}, v30, {s(SWS,4)}, {s(T)} offen offset:{i*1024} sc1")
    A(f"""s_lshl_b32 {s(T)}, {s(HEAD)}, 4
    s_add_u32 {s(T)}, {s(T)}, {s(RB)}
    s_lshl_b32 {s(T)}, {s(T)}, 1
    s_and_b32 {s(T+1)}, {s(WV)}, 1
    s_add_u32 {s(T)}, {s(T)}, {s(T+1)}
    s_lshl_b32 {s(T)}, {s(T)}, 7
    s_add_u32 {s(T)}, {s(T)}, {WS_Z}
    v_lshlrev_b32 v51, 2, v1
    s_mov_b32 exec_hi, 0
    buffer_store_dword {v(ZZ)}, v51, {s(SWS,4)}, {s(T)} offen sc1
    s_mov_b64 exec, -1""")
    for ins in q0[1] + q1[1]: A(ins)
    stamp(A, opt, 3)
    qb = interleave(q0[2], q1[2])
    n1 = opt.get('qsplit', 110)
    for ins in qb[:n1]: A(ins)
    A("s_waitcnt vmcnt(0)")
    get_nonce(A, 'G', 28, 26, 52, 58)
    FO = 59
    A(f"""s_lshl_b32 {s(T)}, {s(HP)}, 2
    s_add_u32 {s(T)}, {s(T)}, {s(WV)}
    s_lshl_b32 {s(T)}, {s(T)}, 4
    s_add_u32 {s(T)}, {s(T)}, {s(RB)}
    s_lshl_b32 {s(FO)}, {s(T)}, 3
    s_add_u32 {s(T)}, {s(FO)}, {WS_KF1}
    s_mov_b64 exec, 1
    buffer_store_dwordx2 v[28:29], v26, {s(SWS,4)}, {s(T)} offen sc1
    s_mov_b64 exec, -1""")
    for ins in qb[n1:]: A(ins)
    A(f"""s_lshl_b32 {s(T+3)}, {s(HEAD)}, 8
    s_add_u32 {s(T)}, {s(T+3)}, {WS_KF1}
    v_and_b32 v14, 31, v1
    v_lshlrev_b32 v14, 3, v14""")
    poll(A, 'G1', 14, SWS, T, 28, 16, 58)
    stamp(A, opt, 4)
    A(f"""s_lshl_b32 {s(T)}, {s(HP)}, 18
    s_lshl_b32 {s(T+1)}, {s(WV)}, 12
    s_add_u32 {s(T)}, {s(T)}, {s(T+1)}
    s_lshl_b32 {s(T+1)}, {s(RB)}, 8
    s_add_u32 {s(T)}, {s(T)}, {s(T+1)}
    s_add_u32 {s(T)}, {s(T)}, {WS_P1}""")
    for p in range(16):
        A(f"buffer_load_dword {v(64+p)}, v51, {s(SWS,4)}, {s(T)} offen sc1")
        if p < 15: A(f"s_add_u32 {s(T)}, {s(T)}, 16384")
    A(f"s_lshl_b32 {s(T)}, {s(HEAD)}, 12\ns_add_u32 {s(T)}, {s(T)}, {WS_Z}")
    for p in range(16):
        A(f"buffer_load_dword {v(80+p)}, v51, {s(SWS,4)}, {s(T)} offen offset:{p*256} sc1")
    def tree(b):
        o = []
        for w_ in (8, 4, 2):
            for i in range(0, w_, 2): o.append(f"v_pk_add_f32 {v(b+i,2)}, {v(b+i,2)}, {v(b+w_+i,2)}")
        o.append(f"v_add_f32 {v(b)}, {v(b)}, {v(b+1)}")
        return o
    A(f"""s_lshl_b32 {s(T)}, {s(HP)}, 2
    s_add_u32 {s(T)}, {s(T)}, {s(WV)}
    s_lshl_b32 {s(T)}, {s(T)}, 12
    s_lshl_b32 {s(T+1)}, {s(RB)}, 8
    s_add_u32 {s(T)}, {s(T)}, {s(T+1)}
    s_add_u32 {s(T)}, {s(T)}, {WS_P2}
    s_waitcnt vmcnt(16)""")
    for ins in tree(64): A(ins)
    A(f"buffer_store_dword v64, v51, {s(SWS,4)}, {s(T)} offen sc1")
    A("s_waitcnt vmcnt(1)")
    for ins in tree(80): A(ins)
    A(f"""s_lshl_b32 {s(T)}, {s(WV)}, 8
    s_add_u32 {s(T)}, {s(T)}, 49152
    v_add_u32 v15, {s(T)}, v51
    ds_write_b32 v15, v80
    v_lshrrev_b32 v15, 5, v1
    v_lshlrev_b32 v15, 4, v15
    v_add_u32 v15, {s(T)}, v15
    s_add_u32 {s(T)}, {s(FO)}, {WS_KF2}
    s_waitcnt vmcnt(0) lgkmcnt(0)
    s_mov_b64 exec, 1
    buffer_store_dwordx2 v[28:29], v26, {s(SWS,4)}, {s(T)} offen sc1
    s_mov_b64 exec, -1""")
    for i in range(8): A(f"ds_read_b128 {v(64+4*i,4)}, v15 offset:{i*32}")
    ZF = 96
    A("s_waitcnt lgkmcnt(0)")
    for i in range(16): A(f"v_cvt_pk_bf16_f32 {v(ZF+i)}, {v(64+2*i)}, {v(65+2*i)}")
    DN = (160, 176)
    for jj in range(2):
        for f in range(4):
            A(f"v_mfma_f32_32x32x16_bf16 {v(DN[jj],16)}, {v(ZF+4*f,4)}, {v(OUTQ[jj]+4*f,4)}, {v(DN[jj],16) if f else 0}")
    A(f"s_add_u32 {s(T)}, {s(T+3)}, {WS_KF2}")
    poll(A, 'G2', 14, SWS, T, 28, 16, 58)
    stamp(A, opt, 5)
    A(f"s_lshl_b32 {s(T)}, {s(HEAD)}, 13\ns_add_u32 {s(T)}, {s(T)}, {WS_P2}\ns_add_u32 {s(T+1)}, {s(T)}, 4096")
    for i in range(8):
        A(f"buffer_load_dwordx4 {v(64+4*i,4)}, v30, {s(SWS,4)}, {s(T + (i>>2))} offen offset:{(i&3)*1024} sc1")
    for jj in range(2):
        A(f"v_add_f32 {v(34+2*jj)}, 0x358637bd, {v(DN[jj])}\nv_rcp_f32 {v(34+2*jj)}, {v(34+2*jj)}")
    KF = 112; NN = (128, 144)
    for f in range(4):
        A(f"s_waitcnt vmcnt({6-2*f})")
        for i in range(4): A(f"v_cvt_pk_bf16_f32 {v(KF+4*f+i)}, {v(64+8*f+2*i)}, {v(65+8*f+2*i)}")
        for jj in range(2):
            A(f"v_mfma_f32_32x32x16_bf16 {v(NN[jj],16)}, {v(KF+4*f,4)}, {v(OUTQ[jj]+4*f,4)}, {v(NN[jj],16) if f else 0}")
    A(f"""s_lshl_b32 {s(T)}, {s(RB)}, 1
    s_and_b32 {s(T+1)}, {s(WV)}, 1
    s_add_u32 {s(T)}, {s(T)}, {s(T+1)}
    s_lshl_b32 {s(T)}, {s(T)}, 17
    s_lshl_b32 {s(T+1)}, {s(HEAD)}, 11
    s_add_u32 {s(T)}, {s(T)}, {s(T+1)}
    s_add_u32 {s(T)}, {s(T)}, {WS_O}
    s_add_u32 {s(T+1)}, {s(T)}, 65536""")
    for jj in range(2):
        for i in range(0, 16, 2):
            A(f"v_pk_mul_f32 {v(NN[jj]+i,2)}, {v(NN[jj]+i,2)}, {v(34+2*jj,2)} op_sel_hi:[1,0]")
        for i in range(8):
            A(f"v_cvt_pk_bf16_f32 {v(64+8*jj+i)}, {v(NN[jj]+2*i)}, {v(NN[jj]+2*i+1)}")
        for t in range(2):
            A(f"buffer_store_dwordx4 {v(64+8*jj+4*t,4)}, v30, {s(SWS,4)}, {s(T+jj)} offen offset:{t*1024}{opt.get('wfl','')}")
    stamp(A, opt, 6)
    stamp_end(A, opt, SWS, 0)
    A("s_endpgm")
```

```python
from asmlib import *
from common import *

TP = 272
TW = 60*TP
UB = 65536
LOG2E = 0x3fb8aa3b
INV2PI = 0x3e22f983

def cmul(dst, z, w, t):
    return [f"v_pk_mul_f32 {v(t,2)}, {v(z,2)}, {v(w,2)} op_sel:[1,1] op_sel_hi:[1,0] neg_lo:[1,0]",
            f"v_pk_fma_f32 {v(dst,2)}, {v(z,2)}, {v(w,2)}, {v(t,2)} op_sel:[0,0,0] op_sel_hi:[0,1,1]"]

def interleave(*streams):
    out = []; idx = [0]*len(streams)
    while any(idx[i] < len(st) for i, st in enumerate(streams)):
        for i, st in enumerate(streams):
            if idx[i] < len(st): out.append(st[idx[i]]); idx[i] += 1
    return out

def exp_bf16(A, dst, src, t0, t1, sL, sLlo):
    A(f"""v_mul_f32 {v(t0)}, {s(sL)}, {v(src)}
    v_fma_f32 {v(t1)}, {s(sL)}, {v(src)}, -{v(t0)}
    v_fma_f32 {v(t1)}, {s(sLlo)}, {v(src)}, {v(t1)}
    v_exp_f32 {v(t0)}, {v(t0)}
    v_mul_f32 {v(t1)}, 0x3f317218, {v(t1)}
    v_fma_f32 {v(t0)}, {v(t0)}, {v(t1)}, {v(t0)}
    v_cvt_pk_bf16_f32 {v(t0)}, {v(t0)}, {v(t0)}
    v_lshlrev_b32 {v(dst)}, 16, {v(t0)}""")

def role_s(A, opt):
    WV, CB, M, CG, CH = 20, 21, 22, 23, 24
    T = 26
    SU, SWS, SP = 8, 12, 16
    NON = 30
    A.label('S_entry')
    stamp(A, opt, 0)
    A(f"""s_load_dwordx16 s[36:51], s[0:1], 32
    s_load_dwordx4 s[52:55], s[0:1], 96
    v_lshrrev_b32 v2, 6, v0
    v_and_b32 v1, 63, v0
    v_readfirstlane_b32 {s(WV)}, v2
    s_and_b32 {s(T)}, s2, 7
    s_lshr_b32 {s(T+1)}, s2, 3
    s_and_b32 {s(M)}, {s(T+1)}, 15
    s_lshr_b32 {s(T+1)}, {s(T+1)}, 4
    s_lshl_b32 {s(CB)}, {s(T)}, 1
    s_add_u32 {s(CB)}, {s(CB)}, {s(T+1)}
    s_lshl_b32 {s(CG)}, {s(CB)}, 4
    s_add_u32 {s(CG)}, {s(CG)}, {s(M)}
    s_lshl_b32 {s(CH)}, {s(CG)}, 2
    s_add_u32 {s(CH)}, {s(CH)}, {s(WV)}""")
    A(f"""s_lshl_b32 {s(T)}, {s(CH)}, 8
    v_lshl_add_u32 v3, v1, 1, {s(T)}
    s_lshl_b32 {s(T+1)}, {s(CH)}, 1
    v_mov_b32 v4, {s(T+1)}
    s_waitcnt lgkmcnt(0)""")
    P = 232
    for i in range(10): A(f"v_mov_b32 {v(P+i)}, 0")
    nt = ' nt' if opt.get('nt') else ''
    for k, sp in enumerate((38, 40, 42, 44)):
        A(f"global_load_short_d16_hi {v(P+k)}, v3, {s(sp,2)}{nt}")
    A(f"global_load_short_d16_hi {v(P+8)}, v4, s[46:47]")
    for k, sp in enumerate((38, 40, 42, 44)):
        A(f"global_load_short_d16_hi {v(P+4+k)}, v3, {s(sp,2)} offset:128{nt}")
    A(f"global_load_short_d16_hi {v(P+9)}, v4, s[48:49]")
    srd(A, SU, 36, 4194304)
    srd(A, SWS, 54, WS_SIZE)
    A(f"""v_lshrrev_b32 v5, 3, v1
    v_and_b32 v6, 7, v1
    v_lshlrev_b32 v6, 4, v6
    v_lshl_add_u32 v5, v5, 11, v6
    s_lshl_b32 {s(T)}, {s(M)}, 2
    s_add_u32 {s(T+2)}, {s(T)}, {s(WV)}
    s_lshl_b32 {s(T)}, {s(T+2)}, 16
    s_lshl_b32 {s(T+1)}, {s(CB)}, 7
    s_add_u32 {s(T)}, {s(T)}, {s(T+1)}
    s_lshl_b32 {s(T+1)}, {s(WV)}, 12
    s_add_u32 m0, {s(T+1)}, {UB}""")
    for i in range(4):
        A(f"buffer_load_dwordx4 v5, {s(SU,4)}, {s(T)} offen offset:{i*1024}{nt} lds")
        if i < 3: A(f"s_add_u32 {s(T)}, {s(T)}, {16384-1024}")
    A("v_mov_b32 v7, 0")
    A("global_load_dwordx2 v[8:9], v7, s[52:53] sc1")
    A(f"""v_bfe_u32 v10, v1, 2, 2
    v_lshrrev_b32 v11, 4, v1
    v_lshl_add_u32 v10, v10, 2, v11
    v_and_b32 v12, 3, v1
    v_lshlrev_b32 v13, 3, v12
    v_lshl_add_u32 v10, v10, 7, v13
    s_add_u32 {s(T+1)}, {s(T+1)}, {UB}
    v_add_u32 v10, {s(T+1)}, v10""")
    A(f"""v_bfe_u32 v13, v1, 2, 2
    v_lshlrev_b32 v13, 14, v13
    v_lshl_add_u32 v13, v11, 6, v13
    v_xor_b32 v12, {s(WV)}, v12
    v_lshl_add_u32 v13, v12, 4, v13
    s_lshl_b32 {s(T)}, {s(CB)}, 18
    s_lshl_b32 {s(T+1)}, {s(T+2)}, 8
    s_add_u32 {s(T)}, {s(T)}, {s(T+1)}
    s_add_u32 {s(T)}, {s(T)}, {WS_UT}
    s_waitcnt vmcnt(1)""")
    for z in range(4):
        for j in range(2):
            A(f"ds_read_b64_tr_b16 {v(16+4*z+2*j,2)}, v10 offset:{j*2048 + z*32}")
    for z in range(4):
        A(f"s_waitcnt lgkmcnt({6-2*z})")
        A(f"buffer_store_dwordx4 {v(16+4*z,4)}, v13, {s(SWS,4)}, {s(T)} offen sc1")
        if z < 3: A(f"s_add_u32 {s(T)}, {s(T)}, 65536")
    stamp(A, opt, 1)
    SL, SLL, SIT = 56, 57, 58
    A(f"s_mov_b32 {s(SL)}, {LOG2E}\ns_mov_b32 {s(SLL)}, 0x32a57060\ns_mov_b32 {s(SIT)}, 0")
    DT = 34
    exp_bf16(A, DT, P+8, 36, 37, SL, SLL)
    KA = 200
    for i in range(16): A(f"v_mov_b32 {v(KA+i)}, 0")
    XA, YA = 32, 33
    A(f"""s_mul_i32 {s(T+3)}, {s(WV)}, {TW}
    v_and_b32 v36, 31, v1
    v_lshrrev_b32 v37, 5, v1
    v_mul_u32_u24 v38, {TP}, v36
    v_lshl_add_u32 v38, v37, 4, v38
    v_add_u32 v38, {s(T+3)}, v38
    v_add_u32 {v(YA)}, {28*TP}, v38
    v_cmp_gt_u32 s[60:61], v36, 27
    v_subrev_u32 v39, {2*TP}, v38
    v_cndmask_b32 {v(XA)}, v38, v39, s[60:61]
    s_mov_b32 m0, {s(T+3)}""")
    A.label('S_kpass')
    AL, TH = 40, 41
    exp_bf16(A, AL, P+0, 36, 37, SL, SLL)
    A(f"""v_mul_f32 {v(AL)}, {v(AL)}, {v(DT)}
    v_mul_f32 {v(TH)}, {v(P+1)}, {v(DT)}
    v_mul_f32 {v(AL)}, 0xbfb8aa3b, {v(AL)}
    v_mul_f32 {v(TH)}, {INV2PI}, {v(TH)}
    v_add_f32 v36, {v(DT)}, {v(DT)}""")
    W = {}
    nxt = [44]
    def new(n):
        W[n] = nxt[0]; nxt[0] += 2; return W[n]
    Y = [new('y%d' % i) for i in range(4)]
    A(f"v_mul_f32 {v(Y[0])}, {v(P+2)}, v36\nv_mul_f32 {v(Y[0]+1)}, {v(P+3)}, v36")
    ev = []
    for n, (p, lit) in enumerate(((8, '0x41000000'), (1, '1.0'), (256, '0x43800000'), (32, '0x42000000'))):
        r = new(p); t = 120 + 3*n
        ev.append([f"v_mul_f32 {v(t)}, {lit}, {v(TH)}", f"v_mul_f32 {v(t+1)}, {lit}, {v(AL)}",
                   f"v_fract_f32 {v(t)}, {v(t)}", f"v_exp_f32 {v(t+1)}, {v(t+1)}",
                   f"v_cos_f32 {v(r)}, {v(t)}", f"v_sin_f32 {v(r+1)}, {v(t)}",
                   f"v_mul_f32 {v(r)}, {v(r)}, {v(t+1)}", f"v_mul_f32 {v(r+1)}, {v(r+1)}, {v(t+1)}"])
    for ins in interleave(*ev): A(ins)
    rows = {}
    for h in range(2):
        avals = [4*h, 4*h+1, 4*h+2, 4*h+3, 256+4*h, 258+4*h, 260+4*h, 512+256*h, 516+256*h, 520+256*h, 1024+256*h, 1032+256*h, 1536+256*h, 1544+256*h]
        for r, av in enumerate(avals):
            drow = (r & 3) + 8*(r >> 2) + 4*h
            rows.setdefault(av, []).append(drow if drow < 28 else drow - 2)
    cv = [140]
    def put(reg, trows, neg):
        c = cv[0]; cv[0] = 140 + (cv[0] - 140 + 1) % 8
        o = [f"v_cvt_pk_bf16_f32 {v(c)}, {v(reg)}, {'-' if neg else ''}{v(reg+1)}"]
        for tr in trows: o.append(f"ds_write_addtid_b32 {v(c)} offset:{tr*TP}")
        return o
    def xs(ops, t):
        o = []
        for (d, p, q) in ops:
            keep = d in (2, 3, 4, 6, 512, 768, 1024, 1280, 1536, 1792)
            r = new(d) if keep else t + 2
            o += cmul(r, W[p], W[q], t)
            if d in rows: o += put(r, rows[d], True)
        return o
    pre = ["v_mov_b32 v148, 0x3f80", f"ds_write_addtid_b32 v148 offset:{rows[0][0]*TP}"] + put(W[1], rows[1], True) + put(W[256], rows[256], True) + put(Y[0], [28], False)
    xa1 = xs([(2,1,1), (4,2,2), (3,2,1), (6,4,2)], 150)
    xb1 = xs([(512,256,256), (768,512,256), (1024,512,512), (264,256,8)], 154)
    xa2 = xs([(5,4,1), (7,4,3), (258,256,2), (260,256,4), (262,256,6), (516,512,4), (772,768,4), (520,512,8)], 150)
    xb2 = xs([(1280,1024,256), (1536,1024,512), (1792,1024,768), (776,768,8), (1032,1024,8), (1288,1280,8), (1544,1536,8), (1800,1792,8)], 154)
    y1 = []
    for b in range(1, 4): y1 += cmul(Y[b], Y[b-1], W[8], 158) + put(Y[b], [28+b], False)
    def retag(stream, reg):
        o = []
        for ins in stream:
            if ins.startswith('v_cvt_pk'): ins = re.sub(r'^(v_cvt_pk_bf16_f32) v\d+', rf'\1 v{reg}', ins)
            elif ins.startswith('ds_write_addtid'): ins = re.sub(r'^(ds_write_addtid_b32) v\d+', rf'\1 v{reg}', ins)
            o.append(ins)
        return o
    for ins in pre + interleave(retag(xa1, 168), retag(xb1, 169), retag(y1, 170)): A(ins)
    ys = [[] for _ in range(4)]
    for b in range(4, 32):
        ys[b & 3] += cmul(Y[b & 3], Y[b & 3], W[32], 158 + 2*(b & 3)) + put(Y[b & 3], [28+b], False)
    st = [retag(x, 168+i) for i, x in enumerate([xa2, xb2] + ys)]
    for ins in interleave(*st): A(ins)
    assert nxt[0] <= 120, nxt
    for k in range(4): A(f"v_mov_b32 {v(P+k)}, {v(P+4+k)}")
    A("s_waitcnt lgkmcnt(0)")
    F = 44
    for ks in range(8):
        A(f"ds_read_b128 {v(F+8*ks,4)}, {v(XA)} offset:{ks*32}\nds_read_b128 {v(F+8*ks+4,4)}, {v(YA)} offset:{ks*32}")
        if ks >= 4:
            k2 = ks - 4
            A(f"s_waitcnt lgkmcnt(8)\nv_mfma_f32_32x32x16_bf16 {v(KA,16)}, {v(F+8*k2,4)}, {v(F+8*k2+4,4)}, {v(KA,16)}")
    for k2 in range(4, 8):
        A(f"s_waitcnt lgkmcnt({2*(7-k2)})\nv_mfma_f32_32x32x16_bf16 {v(KA,16)}, {v(F+8*k2,4)}, {v(F+8*k2+4,4)}, {v(KA,16)}")
    A(f"s_add_u32 {s(SIT)}, {s(SIT)}, 1\ns_cmp_eq_u32 {s(SIT)}, 2\ns_cbranch_scc1 S_kdone")
    A("s_waitcnt vmcnt(0)")
    get_nonce(A, 'S', 8, 7, 52, NON)
    A(f"""s_lshl_b32 {s(T)}, {s(CB)}, 9
    s_lshl_b32 {s(T+1)}, {s(T+2)}, 3
    s_add_u32 {s(T)}, {s(T)}, {s(T+1)}
    s_add_u32 {s(T)}, {s(T)}, {WS_UF}
    s_mov_b64 exec, 1
    buffer_store_dwordx2 v[8:9], v7, {s(SWS,4)}, {s(T)} offen sc1
    s_mov_b64 exec, -1
    s_branch S_kpass""")
    A.label('S_kdone')
    stamp(A, opt, 2)
    A(f"""s_lshl_b32 {s(T)}, {s(CB)}, 9
    s_lshl_b32 {s(T+1)}, {s(WV)}, 7
    s_add_u32 {s(T)}, {s(T)}, {s(T+1)}
    s_add_u32 {s(T)}, {s(T)}, {WS_UF}
    v_and_b32 v14, 15, v1
    v_lshlrev_b32 v14, 3, v14""")
    poll(A, 'SU', 14, SWS, T, 8, 16, 60)
    stamp(A, opt, 3)
    A(f"""s_lshl_b32 {s(T)}, {s(CG)}, 14
    s_lshl_b32 {s(T+1)}, {s(WV)}, 12
    s_add_u32 {s(T)}, {s(T)}, {s(T+1)}
    s_add_u32 {s(T)}, {s(T)}, {WS_UT}
    s_add_u32 m0, {s(T+1)}, {UB}
    v_lshlrev_b32 v14, 4, v1""")
    for i in range(4):
        A(f"buffer_load_dwordx4 v14, {s(SWS,4)}, {s(T)} offen offset:{i*1024} sc1 lds")
    A(f"""v_cmp_eq_u32 s[60:61], 0, v1
    v_and_b32 v36, 1, v1
    v_cmp_eq_u32 s[62:63], 0, v36
    v_cndmask_b32 v36, 0, {v(P+9)}, s[60:61]
    v_add_f32 {v(KA)}, {v(KA)}, v36
    v_and_b32 v36, 31, v1
    v_lshrrev_b32 v37, 5, v1
    v_lshlrev_b32 v38, 4, v36
    v_add_u32 v38, {s(T+3)}, v38
    v_lshl_add_u32 v39, v37, 3, v38
    v_lshl_add_u32 v38, v37, 9, v38
    v_cndmask_b32 v40, {v(KA+11)}, {v(KA+10)}, s[62:63]
    v_cndmask_b32 v41, {v(KA+13)}, {v(KA+12)}, s[62:63]""")
    prs = [(0,1),(2,3),(4,4),(5,6),(7,7),(7,8),(8,8),(9,9),(10,10),(10,10),('v40',11),(11,11),(12,12),(12,12),('v41',13),(13,13)]
    for i, (p, q) in enumerate(prs):
        A(f"v_cvt_pk_bf16_f32 {v(44+i)}, {p if isinstance(p,str) else v(KA+p)}, {v(KA+q)}")
    A(f"""ds_write_b64 v39, v[44:45] offset:64
    ds_write_b64 v39, v[46:47] offset:{64+512}
    ds_write_b128 v38, v[48:51] offset:{64+1024}
    ds_write_b128 v38, v[52:55] offset:{64+2048}
    ds_write_b128 v38, v[56:59] offset:{64+3072}""")
    A(f"""v_mov_b32 v60, 0
    v_mov_b32 v61, 0
    v_mov_b32 v62, 0
    v_mov_b32 v63, 0
    v_and_b32 v36, 15, v1
    v_lshlrev_b32 v36, 2, v36
    v_add_u32 v36, {s(T+3)}, v36
    ds_write_b32 v36, v60
    s_cmp_eq_u32 {s(WV)}, 3
    s_cbranch_scc0 S_nopad
    v_lshlrev_b32 v36, 4, v1
    ds_write_b128 v36, v[60:63] offset:{UB-2048}
    ds_write_b128 v36, v[60:63] offset:{UB-1024}""")
    A.label('S_nopad')
    UA, KAD = 2, 3
    A(f"""v_bfe_u32 v36, v1, 2, 3
    v_lshrrev_b32 v37, 5, v1
    v_add3_u32 v36, v36, v37, -1
    v_and_b32 v38, 3, v36
    v_xor_b32 v38, {s(WV)}, v38
    v_lshlrev_b32 v38, 4, v38
    v_lshl_add_u32 v38, v36, 8, v38
    v_and_b32 v39, 3, v1
    v_lshl_add_u32 v38, v39, 6, v38
    v_add_u32 {v(UA)}, {UB}, v38
    v_bfe_u32 v36, v1, 4, 1
    v_lshl_add_u32 v36, v36, 2, v39
    v_bfe_u32 v38, v1, 2, 2
    v_sub_u32 v36, v36, v38
    v_lshlrev_b32 v37, 3, v37
    v_sub_u32 v36, v36, v37
    v_lshlrev_b32 v36, 3, v36
    s_add_u32 {s(T)}, {s(T+3)}, {64 + 64 - 32}
    v_add_u32 {v(KAD)}, {s(T)}, v36""")
    ACC, UF, KF = 64, 192, 224
    for i in range(128): A(f"v_mov_b32 {v(ACC+i)}, 0")
    A("s_waitcnt vmcnt(0) lgkmcnt(0)\ns_barrier")
    stamp(A, opt, 4)
    def rdU(t): return f"ds_read_b128 {v(UF+4*t,4)}, {v(UA)} offset:{t*2048}"
    def rdK(i): return [f"ds_read_b64_tr_b16 {v(KF+4*i+2*j,2)}, {v(KAD)} offset:{i*512 + (1-j)*32}" for j in range(2)]
    for sidx in range(8):
        A(rdU(7-sidx))
        for ins in rdK(sidx): A(ins)
        if sidx == 3: A("s_waitcnt lgkmcnt(3)")
    A(f"s_mov_b32 {s(SIT)}, 0")
    A.label('S_conv')
    A(f"""v_subrev_u32 {v(UA)}, 512, {v(UA)}
    v_add_u32 {v(KAD)}, 128, {v(KAD)}
    v_xor_b32 {v(UA)}, 32, {v(UA)}""")
    for i in range(8):
        for t in range(7-i, -1, -1):
            if i == 0 and t <= 5: A(f"s_waitcnt lgkmcnt({3*t})")
            if i == 0 and t == 7: A("s_waitcnt lgkmcnt(15)")
            c = v(ACC+16*(i+t), 16)
            A(f"v_mfma_f32_32x32x16_bf16 {c}, {v(UF+4*t,4)}, {v(KF+4*i,4)}, {c}")
        A(rdU(7-i))
        for ins in rdK(i): A(ins)
    A(f"s_add_u32 {s(SIT)}, {s(SIT)}, 1\ns_cmp_lt_u32 {s(SIT)}, 4\ns_cbranch_scc1 S_conv")
    stamp(A, opt, 5)
    A(f"""s_mov_b32 s60, 0
    s_mov_b32 s61, 0x80000000
    s_mov_b32 s62, 0
    s_mov_b32 s63, 0xc0000000
    s_mov_b32 s64, 0
    s_mov_b32 s65, 0xe0000000
    v_lshrrev_b32 v4, 4, v1
    v_and_b32 v5, 15, v1
    v_lshlrev_b32 v5, 4, v5
    v_lshl_add_u32 v4, v4, 14, v5
    s_lshl_b32 {s(T)}, {s(CB)}, 18
    s_and_b32 {s(T+1)}, {s(CH)}, 63
    s_lshl_b32 {s(T+1)}, {s(T+1)}, 8
    s_add_u32 {s(T)}, {s(T)}, {s(T+1)}
    s_add_u32 {s(T)}, {s(T)}, {WS_YT + 3*65536}
    s_waitcnt lgkmcnt(0)""")
    DPP = "wave_ror:1 row_mask:0xf bank_mask:0xf"
    for z in range(3, -1, -1):
        for half in (1, 0):
            Gs = [8*z + 4*half + g for g in (3, 2, 1, 0)]
            for rho in (3, 2, 1):
                for G in Gs:
                    r = ACC + 4*G + rho
                    A(f"v_cndmask_b32 {v(r)}, {v(r)}, {v(r-4) if G > 0 else 0}, {s(58+2*rho,2)}")
            for rho in (2, 1, 0):
                for G in Gs:
                    r = ACC + 4*G + rho
                    A(f"v_add_f32_dpp {v(r)}, {v(r+1)}, {v(r)} {DPP}")
            for pr in (1, 0):
                G = 8*z + 4*half + 2*pr
                A(f"v_cvt_pk_bf16_f32 {v(8+4*z+2*half+pr)}, {v(ACC+4*G)}, {v(ACC+4*G+4)}")
        A(f"buffer_store_dwordx4 {v(8+4*z,4)}, v4, {s(SWS,4)}, {s(T)} offen{opt.get('wfl','')}")
        if z: A(f"s_sub_u32 {s(T)}, {s(T)}, 65536")
    stamp(A, opt, 6)
    stamp_end(A, opt, SWS, 1)
    A("s_endpgm")
```

```python
import sys, json
from asmlib import *
from common import *
from roleg import role_g
from ssm import role_s
from k2 import kernel2, K2_LDS

NAME = 'concat_heads__linear_kernel_hedgehog__ssm_conv_s4d__prompt'
def kd(name, vgpr, sgpr=96):
    return f""".amdhsa_kernel {name}
  .amdhsa_next_free_vgpr {vgpr}
  .amdhsa_next_free_sgpr {sgpr}
  .amdhsa_accum_offset {min(256, (vgpr+3)//4*4)}
  .amdhsa_group_segment_fixed_size 0
  .amdhsa_kernarg_size 112
  .amdhsa_user_sgpr_count 2
  .amdhsa_user_sgpr_kernarg_segment_ptr 1
  .amdhsa_system_sgpr_workgroup_id_x 1
.end_amdhsa_kernel
"""
def finish(A):
    L, n = fix_hazards(A.L)
    p = check_waits(L)
    if p:
        print('WAIT PROBLEMS', p[:20]); raise SystemExit(1)
    return '\n'.join(('' if l.endswith(':') else '    ') + l for l in L) + '\n', n
def generate(opt):
    hdr = open('cdna_kernels/' + NAME + '.s.ref').read().split('\n')
    hdr = [l for l in hdr if l.startswith(';') and '@launch' not in l and 'Override' not in l and 'grid=ceil' not in l]
    out = '\n'.join(hdr) + '\n'
    out += "; @launch kernel=k1_kernel grid=(512,1,1) block=(256,1,1) lds=81920\n"
    out += f"; @launch kernel=k2_kernel grid=(256,1,1) block=(256,1,1) lds={K2_LDS}\n"
    out += '.amdgcn_target "amdgcn-amd-amdhsa--gfx950"\n.text\n'
    A = Asm(); A.label('k1_kernel')
    A("""s_cmp_lt_u32 s2, 256
    s_cbranch_scc1 G_entry
    s_cmp_lt_u32 s2, 512
    s_cbranch_scc1 S_pre
    s_endpgm""")
    A.label('S_pre'); A("s_sub_u32 s2, s2, 256")
    role_s(A, opt); role_g(A, opt)
    t, n1 = finish(A)
    out += ".globl k1_kernel\n.p2align 8\n.type k1_kernel,@function\n" + t
    A = Asm(); A.label('k2_kernel'); kernel2(A, opt)
    t, n2 = finish(A)
    out += ".globl k2_kernel\n.p2align 8\n.type k2_kernel,@function\n" + t
    out += '.section .rodata,"a"\n.p2align 6\n' + kd('k1_kernel', 256) + '.p2align 6\n' + kd('k2_kernel', 256)
    print('nops inserted', n1, n2)
    return out
if __name__ == '__main__':
    opt = json.loads(sys.argv[2]) if len(sys.argv) > 2 else {}
    path = sys.argv[1] if len(sys.argv) > 1 else 'cdna_kernels/' + NAME + '.s'
    open(path, 'w').write(generate(opt))
```

```python
from asmlib import *
from common import *

YB = 131072
K2_LDS = 131072 + 8*2080 + 64
def kernel2(A, opt):
    WV, T = 28, 32
    SO, SW, SOUT = 8, 12, 16
    RB, NB = 26, 27
    A("s_cmp_ge_u32 s2, 256\ns_cbranch_scc1 K2_end")
    stamp(A, opt, 0)
    if opt.get('amp'): A("s_memrealtime s[70:71]")
    A("""s_load_dwordx2 s[4:5], s[0:1], 24
    s_load_dwordx2 s[6:7], s[0:1], 88
    s_load_dwordx2 s[54:55], s[0:1], 104
    v_lshrrev_b32 v2, 6, v0
    v_and_b32 v1, 63, v0
    v_readfirstlane_b32 s28, v2
    s_and_b32 s24, s2, 7
    s_lshr_b32 s25, s2, 3""")
    A(f"""s_and_b32 s29, s24, 1
    s_lshl_b32 s29, s29, 1
    s_bfe_u32 s30, s24, 0x10001
    s_add_u32 s29, s29, s30
    s_lshl_b32 {s(RB)}, s29, 2
    s_and_b32 s29, s25, 3
    s_add_u32 {s(RB)}, {s(RB)}, s29
    s_lshr_b32 {s(NB)}, s24, 2
    s_lshl_b32 {s(NB)}, {s(NB)}, 3
    s_lshr_b32 s30, s25, 2
    s_add_u32 {s(NB)}, {s(NB)}, s30
    s_waitcnt lgkmcnt(0)""")
    srd(A, SO, 54, WS_SIZE); srd(A, SW, 4, 2097152); srd(A, SOUT, 6, 8388608)
    A(f"""v_lshrrev_b32 v4, 3, v1
    v_and_b32 v5, 7, v1
    v_lshlrev_b32 v6, 1, v4
    v_and_b32 v6, 4, v6
    v_xor_b32 v5, v5, v6
    v_lshlrev_b32 v5, 4, v5
    v_lshl_add_u32 v4, v4, 11, v5
    s_lshl_b32 {s(T)}, {s(WV)}, 15
    s_lshl_b32 {s(T+1)}, {s(NB)}, 7
    s_add_u32 {s(T)}, {s(T)}, {s(T+1)}
    v_add_u32 v2, {s(T)}, v4
    v_add_u32 v3, {16384-1024}, v2
    v_lshlrev_b32 v4, 4, v1
    s_lshl_b32 {s(T)}, {s(RB)}, 2
    s_add_u32 {s(T)}, {s(T)}, {s(WV)}
    s_lshl_b32 {s(T)}, {s(T)}, 16
    s_add_u32 s20, {s(T)}, {WS_O}
    s_mov_b32 s21, 0
    s_lshl_b32 s22, {s(WV)}, 11""")
    OF = 64; D = opt.get('k2d', 4)
    def issue(slot):
        o = [["s_mov_b32 m0, s22", "s_add_u32 s22, s22, 8192", f"buffer_load_dwordx4 v2, {s(SW,4)}, s21 offen lds"],
             [f"buffer_load_dwordx4 v3, {s(SW,4)}, s21 offen offset:1024 lds", "s_add_u32 s21, s21, 131072"]]
        for i in range(4):
            o.append([f"buffer_load_dwordx4 {v(OF+16*slot+4*i,4)}, v4, {s(SO,4)}, s20 offen offset:{i*1024}"])
        o[-1].append("s_add_u32 s20, s20, 4096")
        return o
    for c in range(D):
        for g in issue(c):
            for ins in g: A(ins)
    A(f"""v_lshrrev_b32 v8, 5, v1
    v_bfe_u32 v9, v1, 2, 2
    v_lshl_add_u32 v8, v8, 2, v9
    v_lshlrev_b32 v8, 7, v8
    v_lshrrev_b32 v9, 1, v9
    v_lshl_add_u32 v8, v9, 6, v8
    v_bfe_u32 v9, v1, 4, 1
    v_lshl_add_u32 v8, v9, 5, v8
    v_and_b32 v9, 3, v1
    v_lshl_add_u32 v6, v9, 3, v8
    v_xor_b32 v7, 64, v6""")
    ACC = 32; WF = 16
    for i in range(32): A(f"v_mov_b32 {v(ACC+i)}, 0")
    NS = D + 1
    WFB = (192, 224)
    def reads(c):
        o = []
        for ks in range(4):
            for nt in range(2):
                for j in range(2):
                    o.append(f"ds_read_b64_tr_b16 {v(WFB[c&1]+8*ks+4*nt+2*j,2)}, {v(6+nt)} offset:{(c&7)*8192 + ks*2048 + j*1024}")
        return o
    outstanding = D
    A(f"s_waitcnt vmcnt({6*(D-1)+4})\ns_barrier")
    for n, ins in enumerate(reads(0)):
        A(ins)
        if n == 11: A("s_waitcnt lgkmcnt(8)")
    stamp(A, opt, 1)
    for c in range(16):
        iss = min(16, c + D)
        if c < 15:
            A(f"s_waitcnt vmcnt({6*(iss-c-2)+4}) lgkmcnt(0)\ns_barrier")
        else:
            A("s_waitcnt vmcnt(4) lgkmcnt(0)")
        if c == 7: A("v_add_u32 v6, 65536, v6\nv_add_u32 v7, 65536, v7")
        rd = reads(c+1) if c < 15 else []
        dm = issue((c + D) % NS) if c + D < 16 else []
        if c == 14:
            dm = [[f"s_lshl_b32 {s(T)}, s2, 14", f"s_lshl_b32 {s(T+1)}, {s(WV)}, 12", f"s_add_u32 {s(T)}, {s(T)}, {s(T+1)}",
                   f"s_add_u32 {s(T)}, {s(T)}, {WS_YT}", f"s_mul_i32 {s(T+1)}, {s(WV)}, 4160", f"s_add_u32 m0, {s(T+1)}, {YB}",
                   f"s_add_u32 {s(T+1)}, {s(T+1)}, {YB+32}",
                   f"buffer_load_dwordx4 v4, {s(SO,4)}, {s(T)} offen lds"],
                  [f"buffer_load_dwordx4 v4, {s(SO,4)}, {s(T)} offen offset:1024 lds"],
                  [f"s_mov_b32 m0, {s(T+1)}", f"buffer_load_dwordx4 v4, {s(SO,4)}, {s(T)} offen offset:2048 lds"],
                  [f"buffer_load_dwordx4 v4, {s(SO,4)}, {s(T)} offen offset:3072 lds"]]
        k = 0
        for ks in range(4):
            for nt in range(2):
                cc = v(ACC+16*nt, 16)
                A(f"v_mfma_f32_32x32x16_bf16 {cc}, {v(WFB[c&1]+8*ks+4*nt,4)}, {v(OF+16*(c%NS)+4*ks,4)}, {cc}")
                for ins in rd[3*k:3*k+3] if k < 5 else rd[15+(k-5):16+(k-5)]: A(ins)
                if k == 4 and rd: A("s_waitcnt lgkmcnt(12)")
                if k < len(dm):
                    for ins in dm[k]: A(ins)
                k += 1
    stamp(A, opt, 2)
    A(f"""v_and_b32 v8, 31, v1
    v_lshrrev_b32 v9, 5, v1
    v_and_b32 v10, 7, v1
    v_lshlrev_b32 v10, 4, v10
    v_lshl_add_u32 v10, v9, 3, v10
    v_lshl_add_u32 v10, v8, 7, v10
    s_lshl_b32 {s(T)}, {s(WV)}, 12
    v_add_u32 v10, {s(T)}, v10
    v_lshrrev_b32 v8, 3, v1
    v_and_b32 v9, 7, v1
    v_xor_b32 v11, v8, v9
    v_lshlrev_b32 v11, 4, v11
    v_lshl_add_u32 v11, v8, 7, v11
    v_add_u32 v11, {s(T)}, v11
    v_lshlrev_b32 v9, 4, v9
    v_lshl_add_u32 v12, v8, 12, v9
    s_lshl_b32 {s(T)}, {s(RB)}, 2
    s_add_u32 {s(T)}, {s(T)}, {s(WV)}
    s_lshl_b32 {s(T)}, {s(T)}, 17
    s_lshl_b32 {s(T+1)}, {s(NB)}, 7
    s_add_u32 {s(T)}, {s(T)}, {s(T+1)}""")
    for u_ in range(8):
        A(f"""v_cvt_pk_bf16_f32 {v(16+2*u_)}, {v(ACC+4*u_)}, {v(ACC+4*u_+1)}
        v_cvt_pk_bf16_f32 {v(17+2*u_)}, {v(ACC+4*u_+2)}, {v(ACC+4*u_+3)}
        v_xor_b32 v13, {16*u_}, v10
        ds_write_b64 v13, {v(16+2*u_,2)}""")
    A("s_waitcnt lgkmcnt(0)")
    for i in range(4): A(f"ds_read_b128 {v(64+4*i,4)}, v11 offset:{i*1024}")
    A(f"""v_and_b32 v8, 7, v1
    v_mul_u32_u24 v13, 2080, v8
    v_lshrrev_b32 v9, 3, v1
    v_lshl_add_u32 v13, v9, 3, v13
    s_lshl_b32 {s(T+1)}, {s(WV)}, 6
    s_add_u32 {s(T+1)}, {s(T+1)}, {YB}
    v_add_u32 v13, {s(T+1)}, v13
    v_and_b32 v9, 1, v9
    v_lshlrev_b32 v9, 20, v9
    v_lshrrev_b32 v14, 4, v1
    v_lshl_add_u32 v9, v14, 12, v9
    v_lshl_add_u32 v14, v8, 4, v9
    s_waitcnt vmcnt(0)
    s_barrier""")
    for c in range(8): A(f"ds_read_b64 {v(96+2*c,2)}, v13 offset:{c*256}")
    for i in range(4):
        A(f"s_waitcnt lgkmcnt({8+3-i})\nbuffer_store_dwordx4 {v(64+4*i,4)}, v12, {s(SOUT,4)}, {s(T)} offen{opt.get('ofl','')}")
        if i < 3: A(f"s_add_u32 {s(T)}, {s(T)}, 32768")
    A(f"""s_lshr_b32 {s(T)}, s2, 4
    s_lshl_b32 {s(T)}, {s(T)}, 7
    s_bfe_u32 {s(T+1)}, s2, 0x20002
    s_lshl_b32 {s(T+1)}, {s(T+1)}, 21
    s_add_u32 {s(T)}, {s(T)}, {s(T+1)}
    s_and_b32 {s(T+1)}, s2, 3
    s_lshl_b32 {s(T+1)}, {s(T+1)}, 2
    s_add_u32 {s(T+1)}, {s(T+1)}, {s(WV)}
    s_lshl_b32 {s(T+1)}, {s(T+1)}, 14
    s_add_u32 {s(T)}, {s(T)}, {s(T+1)}
    s_add_u32 {s(T)}, {s(T)}, 2048
    s_mov_b32 s40, 0x05040100
    s_mov_b32 s41, 0x07060302
    s_waitcnt lgkmcnt(0)""")
    for i in range(4):
        for cp in range(4):
            A(f"v_perm_b32 {v(112+4*i+cp)}, {v(96+4*cp+2+(i>>1))}, {v(96+4*cp+(i>>1))}, {s(40+(i&1))}")
        A(f"buffer_store_dwordx4 {v(112+4*i,4)}, v14, {s(SOUT,4)}, {s(T)} offen{opt.get('ofl','')}")
        if i < 3: A(f"s_add_u32 {s(T)}, {s(T)}, {64*4096}")
    stamp(A, opt, 3)
    stamp_end(A, opt, SO, 2)
    if opt.get('amp'):
        A(f"""s_waitcnt vmcnt(0)
        s_add_u32 s60, s54, {WS_KF2}
        s_addc_u32 s61, s55, 0
        s_load_dword s62, s[60:61], 0
        s_memrealtime s[72:73]
        s_waitcnt lgkmcnt(0)
        s_sub_u32 s63, {'s70' if opt['amp'] == 'start' else 's72'}, s62
        s_min_u32 s63, s63, 20000
        s_mul_i32 s63, s63, 4""")
        A.label('K2_amp')
        A("""s_memrealtime s[74:75]
        s_waitcnt lgkmcnt(0)
        s_sub_u32 s64, s74, s72
        s_cmp_lt_u32 s64, s63
        s_cbranch_scc1 K2_amp""")
    A.label('K2_end')
    A("s_endpgm")
```

```python
import sys, json
from asmlib import *
from common import *
from roleg import role_g
from ssm import role_s
from k2 import kernel2, K2_LDS

NAME = 'concat_heads__linear_kernel_hedgehog__ssm_conv_s4d__prompt'
def kd(name, vgpr, sgpr=96):
    return f""".amdhsa_kernel {name}
  .amdhsa_next_free_vgpr {vgpr}
  .amdhsa_next_free_sgpr {sgpr}
  .amdhsa_accum_offset {min(256, (vgpr+3)//4*4)}
  .amdhsa_group_segment_fixed_size 0
  .amdhsa_kernarg_size 112
  .amdhsa_user_sgpr_count 2
  .amdhsa_user_sgpr_kernarg_segment_ptr 1
  .amdhsa_system_sgpr_workgroup_id_x 1
.end_amdhsa_kernel
"""
def finish(A):
    L, n = fix_hazards(A.L)
    p = check_waits(L)
    if p:
        print('WAIT PROBLEMS', p[:20]); raise SystemExit(1)
    return '\n'.join(('' if l.endswith(':') else '    ') + l for l in L) + '\n', n
def generate(opt):
    hdr = open('cdna_kernels/' + NAME + '.s.ref').read().split('\n')
    hdr = [l for l in hdr if l.startswith(';') and '@launch' not in l and 'Override' not in l and 'grid=ceil' not in l]
    out = '\n'.join(hdr) + '\n'
    if opt.get('emptyfirst'): out += "; @launch kernel=k3_kernel grid=(256,1,1) block=(256,1,1) lds=0\n"
    out += "; @launch kernel=k1_kernel grid=(512,1,1) block=(256,1,1) lds=81920\n"
    out += f"; @launch kernel=k2_kernel grid=(256,1,1) block=(256,1,1) lds={K2_LDS}\n"
    for i in range(opt.get('empty', 0)):
        out += "; @launch kernel=k3_kernel grid=(256,1,1) block=(256,1,1) lds=0\n"
    out += '.amdgcn_target "amdgcn-amd-amdhsa--gfx950"\n.text\n'
    A = Asm(); A.label('k1_kernel')
    A("""s_cmp_lt_u32 s2, 256
    s_cbranch_scc1 G_entry
    s_cmp_lt_u32 s2, 512
    s_cbranch_scc1 S_pre
    s_endpgm""")
    A.label('S_pre'); A("s_sub_u32 s2, s2, 256")
    role_s(A, opt); role_g(A, opt)
    t, n1 = finish(A)
    out += ".globl k1_kernel\n.p2align 8\n.type k1_kernel,@function\n" + t
    A = Asm(); A.label('k2_kernel'); kernel2(A, opt)
    t, n2 = finish(A)
    out += ".globl k2_kernel\n.p2align 8\n.type k2_kernel,@function\n" + t
    if opt.get('empty') or opt.get('emptyfirst'):
        out += ".globl k3_kernel\n.p2align 8\n.type k3_kernel,@function\nk3_kernel:\n    s_endpgm\n"
    out += '.section .rodata,"a"\n.p2align 6\n' + kd('k1_kernel', 256) + '.p2align 6\n' + kd('k2_kernel', 256)
    if opt.get('empty') or opt.get('emptyfirst'): out += '.p2align 6\n' + kd('k3_kernel', 32)
    print('nops inserted', n1, n2)
    return out
if __name__ == '__main__':
    opt = json.loads(sys.argv[2]) if len(sys.argv) > 2 else {}
    path = sys.argv[1] if len(sys.argv) > 1 else 'cdna_kernels/' + NAME + '.s'
    open(path, 'w').write(generate(opt))
```

```python
import sys, json
from asmlib import *
from common import *
from roleg import role_g
from ssm import role_s
from k2 import kernel2, K2_LDS

NAME = 'concat_heads__linear_kernel_hedgehog__ssm_conv_s4d__prompt'
def kd(name, vgpr, sgpr=96):
    return f""".amdhsa_kernel {name}
  .amdhsa_next_free_vgpr {vgpr}
  .amdhsa_next_free_sgpr {sgpr}
  .amdhsa_accum_offset {min(256, (vgpr+3)//4*4)}
  .amdhsa_group_segment_fixed_size 0
  .amdhsa_kernarg_size 112
  .amdhsa_user_sgpr_count 2
  .amdhsa_user_sgpr_kernarg_segment_ptr 1
  .amdhsa_system_sgpr_workgroup_id_x 1
.end_amdhsa_kernel
"""
def finish(A):
    L, n = fix_hazards(A.L)
    p = check_waits(L)
    if p:
        print('WAIT PROBLEMS', p[:20]); raise SystemExit(1)
    return '\n'.join(('' if l.endswith(':') else '    ') + l for l in L) + '\n', n
def probe(opt):
    if 'probe' not in opt: return ''
    off, stride = opt['probe']
    return f"""    s_cmp_eq_u32 s2, 0
    s_cbranch_scc0 K3_end
    s_load_dwordx2 s[4:5], s[0:1], {off}
    v_mov_b32 v1, 0
    s_mov_b32 s6, 0
    s_waitcnt lgkmcnt(0)
K3_l:
    global_load_dword v2, v1, s[4:5]
    s_waitcnt vmcnt(0)
    v_add_u32 v1, {stride}, v1
    s_add_u32 s6, s6, 1
    s_cmp_lt_u32 s6, 128
    s_cbranch_scc1 K3_l
K3_end:
"""
def generate(opt):
    hdr = open('cdna_kernels/' + NAME + '.s.ref').read().split('\n')
    hdr = [l for l in hdr if l.startswith(';') and '@launch' not in l and 'Override' not in l and 'grid=ceil' not in l]
    out = '\n'.join(hdr) + '\n'
    if opt.get('emptyfirst'): out += "; @launch kernel=k3_kernel grid=(256,1,1) block=(256,1,1) lds=0\n"
    out += "; @launch kernel=k1_kernel grid=(512,1,1) block=(256,1,1) lds=81920\n"
    out += f"; @launch kernel=k2_kernel grid=(256,1,1) block=(256,1,1) lds={K2_LDS}\n"
    for i in range(opt.get('empty', 0)):
        out += "; @launch kernel=k3_kernel grid=(256,1,1) block=(256,1,1) lds=0\n"
    out += '.amdgcn_target "amdgcn-amd-amdhsa--gfx950"\n.text\n'
    A = Asm(); A.label('k1_kernel')
    A("""s_cmp_lt_u32 s2, 256
    s_cbranch_scc1 G_entry
    s_cmp_lt_u32 s2, 512
    s_cbranch_scc1 S_pre
    s_endpgm""")
    A.label('S_pre'); A("s_sub_u32 s2, s2, 256")
    role_s(A, opt); role_g(A, opt)
    t, n1 = finish(A)
    out += ".globl k1_kernel\n.p2align 8\n.type k1_kernel,@function\n" + t
    A = Asm(); A.label('k2_kernel'); kernel2(A, opt)
    t, n2 = finish(A)
    out += ".globl k2_kernel\n.p2align 8\n.type k2_kernel,@function\n" + t
    if opt.get('empty') or opt.get('emptyfirst'):
        out += ".globl k3_kernel\n.p2align 8\n.type k3_kernel,@function\nk3_kernel:\n" + probe(opt) + "    s_endpgm\n"
    out += '.section .rodata,"a"\n.p2align 6\n' + kd('k1_kernel', 256) + '.p2align 6\n' + kd('k2_kernel', 256)
    if opt.get('empty') or opt.get('emptyfirst'): out += '.p2align 6\n' + kd('k3_kernel', 32)
    print('nops inserted', n1, n2)
    return out
if __name__ == '__main__':
    opt = json.loads(sys.argv[2]) if len(sys.argv) > 2 else {}
    path = sys.argv[1] if len(sys.argv) > 1 else 'cdna_kernels/' + NAME + '.s'
    open(path, 'w').write(generate(opt))
```

```python
from asmlib import *
WS_SIZE = 268435456
WS_UT = 0
WS_YT = 4<<20
WS_O = 8<<20
WS_P1 = 12<<20
WS_P2 = 16<<20
WS_Z = (16<<20) + (512<<10)
WS_UF = 17<<20
WS_KF1 = WS_UF + 16384
WS_KF2 = WS_UF + 32768
WS_ST = 18<<20
SPIN_MAX = 1 << 20

def srd(A, d, p, n):
    A(f"s_mov_b32 {s(d)}, {s(p)}\ns_mov_b32 {s(d+1)}, {s(p+1)}\ns_mov_b32 {s(d+2)}, {n}\ns_mov_b32 {s(d+3)}, 0x20000")

def get_nonce(A, tag, vn, vz, sdbg, scnt):
    A(f"s_mov_b32 {s(scnt)}, 0")
    A.label(f'{tag}_non')
    A(f"""v_cmp_ne_u64 vcc, 0, {v(vn,2)}
    s_add_u32 {s(scnt)}, {s(scnt)}, 1
    s_nop 3
    s_cbranch_vccnz {tag}_nonok
    s_cmp_gt_u32 {s(scnt)}, {SPIN_MAX}
    s_cbranch_scc1 {tag}_nonok
    global_load_dwordx2 {v(vn,2)}, {v(vz)}, {s(sdbg,2)} sc1
    s_waitcnt vmcnt(0)
    s_branch {tag}_non""")
    A.label(f'{tag}_nonok')

def poll(A, tag, voff, srdr, soff, vn, vt, scnt, sleep=0, off=0):
    A(f"s_mov_b32 {s(scnt)}, 0")
    A.label(f'{tag}_poll')
    A(f"""buffer_load_dwordx2 {v(vt,2)}, {v(voff)}, {s(srdr,4)}, {s(soff)} offen offset:{off} sc1
    s_add_u32 {s(scnt)}, {s(scnt)}, 1
    s_cmp_gt_u32 {s(scnt)}, {SPIN_MAX}
    s_cbranch_scc1 {tag}_pollok
    s_waitcnt vmcnt(0)
    v_cmp_ne_u64 vcc, {v(vt,2)}, {v(vn,2)}
    s_nop 4
    s_cbranch_vccz {tag}_pollok""")
    if sleep: A(f"s_sleep {sleep}")
    A(f"s_branch {tag}_poll")
    A.label(f'{tag}_pollok')
    A("s_waitcnt vmcnt(0)")

def stamp(A, opt, i):
    if opt.get('stamps'):
        A(f"s_memrealtime {s(80+2*i,2)}\ns_waitcnt lgkmcnt(0)")
def stamp_end(A, opt, srdr, role):
    if not opt.get('stamps'): return
    A("s_waitcnt vmcnt(0)\ns_memrealtime s[94:95]\ns_waitcnt lgkmcnt(0)")
    for i in range(8): A(f"v_mov_b32 {v(8+i)}, {s(80+2*i)}")
    A(f"""v_lshrrev_b32 v2, 6, v0
    v_lshlrev_b32 v2, 5, v2
    s_lshl_b32 s80, s2, 8
    s_add_u32 s80, s80, {WS_ST + role*65536}
    s_mov_b64 exec, 1
    buffer_store_dwordx4 v[8:11], v2, {s(srdr,4)}, s80 offen
    buffer_store_dwordx4 v[12:15], v2, {s(srdr,4)}, s80 offen offset:16
    s_waitcnt vmcnt(0)""")
```

```python
from asmlib import *
import re
TP = 272
LOG2E = 0x3fb8aa3b
INV2PI = 0x3e22f983

def interleave(*streams):
    out = []; idx = [0]*len(streams)
    while any(idx[i] < len(st) for i, st in enumerate(streams)):
        for i, st in enumerate(streams):
            if idx[i] < len(st): out.append(st[idx[i]]); idx[i] += 1
    return out

def cmul(dst, z, w, t, pk):
    if pk:
        return [f"v_pk_mul_f32 {v(t,2)}, {v(z,2)}, {v(w,2)} op_sel:[1,1] op_sel_hi:[1,0] neg_lo:[1,0]",
                f"v_pk_fma_f32 {v(dst,2)}, {v(z,2)}, {v(w,2)}, {v(t,2)} op_sel:[0,0,0] op_sel_hi:[0,1,1]"]
    return [f"v_mul_f32 {v(t)}, {v(z+1)}, {v(w+1)}", f"v_mul_f32 {v(t+1)}, {v(z+1)}, {v(w)}",
            f"v_fma_f32 {v(dst+1)}, {v(z)}, {v(w+1)}, {v(t+1)}", f"v_fma_f32 {v(dst)}, {v(z)}, {v(w)}, -{v(t)}"]

def exp_bf16(dst, src, t0, t1, sL, sLlo):
    return [f"v_mul_f32 {v(t0)}, {s(sL)}, {v(src)}",
            f"v_fma_f32 {v(t1)}, {s(sL)}, {v(src)}, -{v(t0)}",
            f"v_fma_f32 {v(t1)}, {s(sLlo)}, {v(src)}, {v(t1)}",
            f"v_exp_f32 {v(t0)}, {v(t0)}",
            f"v_mul_f32 {v(t1)}, 0x3f317218, {v(t1)}",
            f"v_fma_f32 {v(t0)}, {v(t0)}, {v(t1)}, {v(t0)}",
            f"v_cvt_pk_bf16_f32 {v(t0)}, {v(t0)}, {v(t0)}",
            f"v_lshlrev_b32 {v(dst)}, 16, {v(t0)}"]

def kpass(P, DT, KA, XA, YA, SL, SLL, pk, first):
    o = []
    AL, TH = 40, 41
    XF = 176
    o += exp_bf16(AL, P, 36, 37, SL, SLL)
    o += [f"v_mul_f32 {v(AL)}, {v(AL)}, {v(DT)}", f"v_mul_f32 {v(TH)}, {v(P+1)}, {v(DT)}",
          f"v_mul_f32 {v(AL)}, 0xbfb8aa3b, {v(AL)}", f"v_mul_f32 {v(TH)}, {INV2PI}, {v(TH)}", f"v_add_f32 v36, {v(DT)}, {v(DT)}"]
    W = {}; nxt = [76]
    def new(n):
        W[n] = nxt[0]; nxt[0] += 2; return W[n]
    Y = [new('y%d' % i) for i in range(4)]
    o += [f"v_mul_f32 {v(Y[0])}, {v(P+2)}, v36", f"v_mul_f32 {v(Y[0]+1)}, {v(P+3)}, v36"]
    ev = []
    for n, (p, lit) in enumerate(((8, '0x41000000'), (1, '1.0'), (256, '0x43800000'), (32, '0x42000000'))):
        r = new(p); t = 120 + 3*n
        ev.append([f"v_mul_f32 {v(t)}, {lit}, {v(TH)}", f"v_mul_f32 {v(t+1)}, {lit}, {v(AL)}",
                   f"v_fract_f32 {v(t)}, {v(t)}", f"v_exp_f32 {v(t+1)}, {v(t+1)}",
                   f"v_cos_f32 {v(r)}, {v(t)}", f"v_sin_f32 {v(r+1)}, {v(t)}",
                   f"v_mul_f32 {v(r)}, {v(r)}, {v(t+1)}", f"v_mul_f32 {v(r+1)}, {v(r+1)}, {v(t+1)}"])
    o += interleave(*ev)
    rows = {}
    for h in range(2):
        avals = [4*h, 4*h+1, 4*h+2, 4*h+3, 256+4*h, 258+4*h, 260+4*h, 512+256*h, 516+256*h, 520+256*h, 1024+256*h, 1032+256*h, 1536+256*h, 1544+256*h]
        for r, av in enumerate(avals):
            drow = (r & 3) + 8*(r >> 2) + 4*h
            rows.setdefault(av, []).append(drow if drow < 28 else drow - 2)
    def put(reg, trows, neg, c):
        return [f"v_cvt_pk_bf16_f32 {v(c)}, {v(reg)}, {'-' if neg else ''}{v(reg+1)}"] + [f"ds_write_addtid_b32 {v(c)} offset:{tr*TP}" for tr in trows]
    def xs(ops, t, c):
        r_ = []
        for (d, p, q) in ops:
            keep = d in (2, 3, 4, 6, 512, 768, 1024, 1280, 1536, 1792)
            r = new(d) if keep else t + 2
            r_ += cmul(r, W[p], W[q], t, pk)
            if d in rows: r_ += put(r, rows[d], True, c)
        return r_
    o += ["v_mov_b32 v148, 0x3f80", f"ds_write_addtid_b32 v148 offset:{rows[0][0]*TP}"] + interleave(put(W[1], rows[1], True, 140), put(W[256], rows[256], True, 141))
    xa1 = xs([(2,1,1), (4,2,2), (3,2,1), (6,4,2)], 150, 168)
    xb1 = xs([(512,256,256), (768,512,256), (1024,512,512), (264,256,8)], 154, 169)
    y1 = []
    for b in range(1, 4): y1 += cmul(Y[b], Y[b-1], W[8], 158, pk)
    o += interleave(xa1, xb1, y1)
    xa2 = xs([(5,4,1), (7,4,3), (258,256,2), (260,256,4)], 150, 168)
    xb2 = xs([(1280,1024,256), (1536,1024,512), (1792,1024,768), (776,768,8)], 154, 169)
    xc2 = xs([(262,256,6), (516,512,4), (772,768,4), (520,512,8)], 158, 170)
    o += interleave(xa2, xb2, xc2)
    o += interleave(xs([(1032,1024,8)], 150, 168), xs([(1288,1280,8)], 154, 169), xs([(1544,1536,8)], 158, 170), xs([(1800,1792,8)], 162, 171))
    assert nxt[0] <= 120, nxt
    o += [f"ds_read_b128 {v(XF+4*ks,4)}, {v(XA)} offset:{ks*32}" for ks in range(8)]
    ys = [put(Y[b], [b], False, 168+b) for b in range(4)]
    for b in range(4, 32):
        ys[b & 3] += cmul(Y[b & 3], Y[b & 3], W[32], 150 + 2*(b & 3), pk) + put(Y[b & 3], [b], False, 168 + (b & 3))
    o += interleave(*ys)
    F = 44
    o += [f"ds_read_b128 {v(F+4*ks,4)}, {v(YA)} offset:{ks*32}" for ks in range(8)]
    for ks in range(8):
        o += [f"s_waitcnt lgkmcnt({7-ks})", f"v_mfma_f32_32x32x16_bf16 {v(KA,16)}, {v(XF+4*ks,4)}, {v(F+4*ks,4)}, {0 if first and ks == 0 else v(KA,16)}"]
    return o

def kvals(P, DT, OUT, SL, SLL, pk, pk2=None):
    o = []
    AL, TH = 40, 41
    o += exp_bf16(AL, P, 36, 37, SL, SLL)
    o += [f"v_mul_f32 {v(AL)}, {v(AL)}, {v(DT)}", f"v_mul_f32 {v(TH)}, {v(P+1)}, {v(DT)}",
          f"v_mul_f32 {v(AL)}, 0xbfb8aa3b, {v(AL)}", f"v_mul_f32 {v(TH)}, {INV2PI}, {v(TH)}", f"v_add_f32 v36, {v(DT)}, {v(DT)}"]
    W = {}; nxt = [44]
    def new(n):
        W[n] = nxt[0]; nxt[0] += 2; return W[n]
    Y = [new('y%d' % i) for i in range(4)]
    o += [f"v_mul_f32 {v(Y[0])}, {v(P+2)}, v36", f"v_mul_f32 {v(Y[0]+1)}, {v(P+3)}, v36"]
    ev = []
    for n, (p, lit) in enumerate(((8, '0x41000000'), (1, '1.0'), (256, '0x43800000'), (32, '0x42000000'))):
        r = new(p); t = 88 + 2*n
        ev.append([f"v_mul_f32 {v(t)}, {lit}, {v(TH)}", f"v_mul_f32 {v(t+1)}, {lit}, {v(AL)}",
                   f"v_fract_f32 {v(t)}, {v(t)}", f"v_exp_f32 {v(t+1)}, {v(t+1)}",
                   f"v_cos_f32 {v(r)}, {v(t)}", f"v_sin_f32 {v(r+1)}, {v(t)}",
                   f"v_mul_f32 {v(r)}, {v(r)}, {v(t+1)}", f"v_mul_f32 {v(r+1)}, {v(r+1)}, {v(t+1)}"])
    o += interleave(*ev)
    rows = {}
    for h in range(2):
        avals = [4*h, 4*h+1, 4*h+2, 4*h+3, 256+4*h, 258+4*h, 260+4*h, 512+256*h, 516+256*h, 520+256*h, 1024+256*h, 1032+256*h, 1536+256*h, 1544+256*h]
        for r, av in enumerate(avals):
            drow = (r & 3) + 8*(r >> 2) + 4*h
            rows.setdefault(av, []).append(drow if drow < 28 else drow - 2)
    keys = sorted(k_ for k_ in rows if k_)
    assert len(keys) == 26
    def putx(reg, d): return [f"v_cvt_pk_bf16_f32 {v(OUT+keys.index(d))}, {v(reg)}, -{v(reg+1)}"]
    def puty(reg, b): return [f"v_cvt_pk_bf16_f32 {v(OUT+26+b)}, {v(reg)}, {v(reg+1)}"]
    def xs(ops, t):
        r_ = []
        for (d, p, q) in ops:
            keep = d in (2, 3, 4, 6, 512, 768, 1024, 1280, 1536, 1792)
            r = new(d) if keep else t + 2
            r_ += cmul(r, W[p], W[q], t, pk) + putx(r, d)
        return r_
    o += putx(W[1], 1) + putx(W[256], 256) + puty(Y[0], 0)
    y1 = []
    for b in range(1, 4): y1 += cmul(Y[b], Y[b-1], W[8], 96, pk) + puty(Y[b], b)
    o += interleave(xs([(2,1,1), (4,2,2), (3,2,1), (6,4,2)], 88), xs([(512,256,256), (768,512,256), (1024,512,512), (264,256,8)], 92), y1)
    o += interleave(xs([(5,4,1), (7,4,3), (258,256,2), (260,256,4)], 88), xs([(1280,1024,256), (1536,1024,512), (1792,1024,768), (776,768,8)], 92),
                    xs([(262,256,6), (516,512,4), (772,768,4), (520,512,8)], 96))
    o += interleave(xs([(1032,1024,8)], 88), xs([(1288,1280,8)], 92), xs([(1544,1536,8)], 96), xs([(1800,1792,8)], 100))
    assert nxt[0] <= 88, nxt
    ys = [[] for _ in range(4)]
    if pk2 is not None: o.append('#split'); pk = pk2
    for b in range(4, 32):
        ys[b & 3] += cmul(Y[b & 3], Y[b & 3], W[32], 88 + 2*(b & 3), pk) + puty(Y[b & 3], b)
    o += interleave(*ys)
    return o, [rows[k_] for k_ in keys], rows[0]

def klds(OUT, xrows, row0, ONE, XA, YA, XF, F, KA, first, B0=0):
    x = [f"ds_write_addtid_b32 {v(ONE)} offset:{B0 + r*TP}" for r in row0]
    for i, rs in enumerate(xrows): x += [f"ds_write_addtid_b32 {v(OUT+i)} offset:{B0 + r*TP}" for r in rs]
    x += [f"ds_read_b128 {v(XF+4*ks,4)}, {v(XA)} offset:{B0 + ks*32}" for ks in range(8)]
    y = [f"ds_write_addtid_b32 {v(OUT+26+b)} offset:{B0 + b*TP}" for b in range(32)]
    y += [f"ds_read_b128 {v(F+4*ks,4)}, {v(YA)} offset:{B0 + ks*32}" for ks in range(8)]
    m = [f"v_mfma_f32_32x32x16_bf16 {v(KA,16)}, {v(XF+4*ks,4)}, {v(F+4*ks,4)}, {0 if first and ks == 0 else v(KA,16)}" for ks in range(8)]
    return x, y, m
```

```python
from asmlib import *
from common import *
SLOT = 40960
XO, WO = 0, 16384

def ids(A, opt):
    arr = opt.get('arr', 8)
    lr = {16: 4, 8: 3, 4: 2, 2: 1}[arr]
    xr = 4 - lr
    A(f"""v_lshrrev_b32 v2, 6, v0
    v_and_b32 v1, 63, v0
    v_readfirstlane_b32 s28, v2
    s_and_b32 s24, s2, 7
    s_lshr_b32 s25, s2, 3
    s_and_b32 s26, s24, {(1<<xr)-1}
    s_lshl_b32 s26, s26, {lr}
    s_and_b32 s29, s25, {arr-1}
    s_add_u32 s26, s26, s29
    s_lshr_b32 s27, s24, {xr}
    s_lshl_b32 s27, s27, {5-lr}
    s_lshr_b32 s30, s25, {lr}
    s_add_u32 s27, s27, s30
    s_lshr_b32 s31, s28, 2
    s_and_b32 s28, s28, 3""")

class Loader:
    def __init__(s_, va=2, sx=8, sw=12, sc=16):
        s_.va, s_.sx, s_.sw = va, sx, sw
        s_.kx, s_.kw, s_.kw2, s_.ms, s_.mx, s_.mw, s_.ck = sc, sc+1, sc+2, sc+3, sc+4, sc+5, sc+6
    def setup(L, A, opt, t0):
        t1, t2 = t0+1, t0+2; T = 32
        va = L.va
        A(f"""v_lshrrev_b32 {v(t0)}, 3, v1
        v_and_b32 {v(t1)}, 7, v1
        v_lshrrev_b32 {v(t2)}, 4, v1
        v_xor_b32 {v(t2)}, {v(t1)}, {v(t2)}
        v_lshlrev_b32 {v(t2)}, 4, {v(t2)}
        v_lshl_add_u32 {v(t2)}, {v(t0)}, 11, {v(t2)}
        s_lshl_b32 {s(T)}, s26, 2
        s_add_u32 {s(T)}, {s(T)}, s28
        s_lshl_b32 {s(T)}, {s(T)}, 16
        v_add_u32 {v(va)}, {s(T)}, {v(t2)}
        v_xor_b32 {v(t2)}, 64, {v(va)}
        v_add_u32 {v(va+1)}, {16384-1024}, {v(t2)}
        v_add_u32 {v(va+2)}, {2*(16384-1024)}, {v(va)}
        v_add_u32 {v(va+3)}, {3*(16384-1024)}, {v(t2)}
        s_lshl_b32 {s(L.mx)}, s28, 12
        v_lshlrev_b32 {v(t2)}, 1, {v(t0)}
        v_and_b32 {v(t2)}, 4, {v(t2)}
        v_xor_b32 {v(t2)}, {v(t1)}, {v(t2)}
        s_and_b32 {s(T)}, s28, {1 if opt.get('m16') else 0}
        s_lshl_b32 {s(T)}, {s(T)}, 1
        v_xor_b32 {v(t2)}, {s(T)}, {v(t2)}
        v_lshlrev_b32 {v(t2)}, 4, {v(t2)}
        v_mul_u32_u24 {v(t0)}, 6144, {v(t0)}
        v_add_u32 {v(t2)}, {v(t0)}, {v(t2)}
        s_mul_i32 {s(T)}, s28, {8*6144}
        s_lshl_b32 {s(T+1)}, s27, 7
        s_add_u32 {s(T)}, {s(T)}, {s(T+1)}
        v_add_u32 {v(va+4)}, {s(T)}, {v(t2)}
        v_add_u32 {v(va+5)}, 1024, {v(va+4)}
        v_add_u32 {v(va+6)}, 2048, {v(va+4)}
        s_mul_i32 {s(L.mw)}, s28, 3072
        s_add_u32 {s(L.mw)}, {s(L.mw)}, {WO}
        s_mov_b32 {s(L.ms)}, 0""")
        rot = opt.get('rot', 0)
        k = L.ck
        xm = opt.get('xor', 0)
        if xm == 7: A("s_lshl_b32 s23, s30, 1\ns_add_u32 s23, s23, s29\ns_and_b32 s23, s23, 7")
        else: A(f"s_add_u32 s23, s30, s29\ns_and_b32 s23, s23, {xm}")
        if rot == 0: A(f"s_mov_b32 {s(k)}, 0")
        elif rot == 1: A(f"s_lshl_b32 {s(k)}, s30, 1\ns_add_u32 {s(k)}, {s(k)}, s29\ns_lshl_b32 {s(k)}, {s(k)}, 1\ns_and_b32 {s(k)}, {s(k)}, 15")
        elif rot == 3: A(f"s_lshl_b32 {s(k)}, s24, 1")
        elif rot == 4: A(f"s_add_u32 {s(k)}, s30, s29\ns_and_b32 {s(k)}, {s(k)}, 3\ns_lshl_b32 {s(k)}, {s(k)}, 2")
        elif rot == 5: A(f"s_lshr_b32 {s(k)}, s24, 1\ns_and_b32 {s(T)}, s24, 1\ns_lshl_b32 {s(T)}, {s(T)}, 1\ns_add_u32 {s(k)}, {s(k)}, {s(T)}\ns_and_b32 {s(k)}, {s(k)}, 3\ns_lshl_b32 {s(k)}, {s(k)}, 2")
        elif rot == 6: A(f"s_add_u32 {s(k)}, s30, s29\ns_and_b32 {s(k)}, {s(k)}, 1\ns_lshl_b32 {s(k)}, {s(k)}, 3")
        A('s_waitcnt lgkmcnt(0)')
        srd(A, L.sx, 4, 4194304); srd(A, L.sw, 6, 6291456)
    def chunk(L, opt):
        fx = opt.get('xfl', ''); fw = opt.get('wfl2', '')
        g = [[f"s_xor_b32 {s(L.kw)}, {s(L.ck)}, s23", f"s_lshl_b32 {s(L.kx)}, {s(L.kw)}, 7", f"s_mul_i32 {s(L.kw)}, {s(L.kw)}, {64*6144}",
              f"s_add_u32 m0, {s(L.ms)}, {s(L.mw)}", f"s_add_u32 {s(L.kw2)}, {s(L.kw)}, {32*6144}"]]
        for p in range(3):
            g[-1].append(f"buffer_load_dwordx4 {v(L.va+4+p)}, {s(L.sw,4)}, {s(L.kw)} offen offset:{p*1024}{fw} lds"); g.append([])
        g[-1] += [f"s_add_u32 m0, {s(L.ms)}, {s(L.mx)}", f"s_add_u32 {s(L.ck)}, {s(L.ck)}, 1"]
        for i in range(4):
            g[-1].append(f"buffer_load_dwordx4 {v(L.va+i)}, {s(L.sx,4)}, {s(L.kx)} offen offset:{i*1024}{fx} lds"); g.append([])
        g[-1] += [f"s_add_u32 m0, {s(L.ms)}, {s(L.mw)}", f"s_add_u32 m0, m0, 12288", f"s_and_b32 {s(L.ck)}, {s(L.ck)}, 15"]
        for p in range(3):
            g[-1].append(f"buffer_load_dwordx4 {v(L.va+4+p)}, {s(L.sw,4)}, {s(L.kw2)} offen offset:{p*1024}{fw} lds"); g.append([])
        g[-1] += [f"s_add_u32 {s(L.ms)}, {s(L.ms)}, {SLOT}", f"s_cmp_eq_u32 {s(L.ms)}, {3*SLOT}", f"s_cselect_b32 {s(L.ms)}, 0, {s(L.ms)}"]
        return g

def g_addr(A, vxr, vwr, t0):
    t1, t2 = t0+1, t0+2; T = 32
    A(f"""v_and_b32 {v(t0)}, 31, v1
    v_lshrrev_b32 {v(t1)}, 5, v1
    v_bfe_u32 {v(t2)}, v1, 1, 3
    v_xor_b32 {v(t2)}, {v(t1)}, {v(t2)}
    v_lshlrev_b32 {v(t2)}, 4, {v(t2)}
    v_lshl_add_u32 {v(t2)}, {v(t0)}, 7, {v(t2)}
    s_and_b32 {s(T)}, s28, 1
    s_lshl_b32 {s(T)}, {s(T)}, 13
    v_add_u32 {v(vxr)}, {s(T)}, {v(t2)}
    v_xor_b32 {v(vxr+1)}, 32, {v(vxr)}
    v_xor_b32 {v(vxr+2)}, 64, {v(vxr)}
    v_xor_b32 {v(vxr+3)}, 96, {v(vxr)}
    v_mul_u32_u24 {v(t1)}, 3072, {v(t1)}
    v_bfe_u32 {v(t0)}, v1, 2, 2
    v_lshl_add_u32 {v(t1)}, {v(t0)}, 7, {v(t1)}
    v_lshrrev_b32 {v(t0)}, 1, {v(t0)}
    s_lshr_b32 {s(T)}, s28, 1
    v_xor_b32 {v(t0)}, {s(T)}, {v(t0)}
    v_lshl_add_u32 {v(t1)}, {v(t0)}, 6, {v(t1)}
    v_bfe_u32 {v(t0)}, v1, 4, 1
    v_lshl_add_u32 {v(t1)}, {v(t0)}, 5, {v(t1)}
    v_and_b32 {v(t0)}, 3, v1
    v_lshl_add_u32 {v(vwr)}, {v(t0)}, 3, {v(t1)}""")

def g_loop(A, opt, acc, FB, vxr, vwr, at_loop=None):
    SD, SI, SS = 16, 17, 18
    def rd(ks, buf):
        b = FB + 20*buf
        w = [f"ds_read_b64_tr_b16 {v(b+8+p*4+2*j,2)}, {v(vwr)} offset:{WO + ks*6144 + p*1024 + j*512}" for p in range(3) for j in range(2)]
        x = [f"ds_read_b128 {v(b+4*j,4)}, {v(vxr+ks)} offset:{j*4096}" for j in range(2)]
        return [w[0], w[1], x[0], x[1]] + w[2:]
    def mf(buf):
        b = FB + 20*buf; o = []
        for p in range(3):
            for j in range(2):
                c = v(acc + (p*2+j)*16, 16); x = v(b+4*j, 4); w = v(b+8+p*4, 4)
                o.append(f"v_mfma_f32_32x32x16_bf16 {c}, {w}, {x}, {c}" if p < 2 else f"v_mfma_f32_32x32x16_bf16 {c}, {x}, {w}, {c}")
        return o
    A(f"s_mov_b32 {s(SI)}, 0\ns_mov_b32 {s(SS)}, 0\ns_mov_b32 s19, {SLOT}")
    A("s_barrier")
    for ins in rd(0, 0): A(ins)
    if at_loop: at_loop(A)
    A.label('G_loop')
    pat = opt.get('rpat', (3, 3, 2, 0, 0, 0))
    for ks in range(4):
        extra = [[] for _ in range(6)]
        if ks == 0:
            extra[3] = [f"s_add_u32 {s(SS)}, {s(SS)}, 1", f"s_cmp_eq_u32 {s(SS)}, 3", f"s_cselect_b32 {s(SD)}, {(-2*SLOT) & 0xffffffff}, s19", f"s_cselect_b32 {s(SS)}, 0, {s(SS)}"]
            extra[4] = [f"v_add_u32 {v(vxr)}, {s(SD)}, {v(vxr)}", f"v_add_u32 {v(vxr+1)}, {s(SD)}, {v(vxr+1)}"]
        if ks == 1: extra[4] = [f"v_add_u32 {v(vxr+2)}, {s(SD)}, {v(vxr+2)}"]
        if ks == 2: extra[4] = [f"v_add_u32 {v(vxr+3)}, {s(SD)}, {v(vxr+3)}", f"v_add_u32 {v(vwr)}, {s(SD)}, {v(vwr)}"]
        if ks == 3: extra[4] = [f"s_add_u32 {s(SI)}, {s(SI)}, 1", f"s_cmp_lt_u32 {s(SI)}, 16"]
        A("s_waitcnt lgkmcnt(0)")
        if ks == 3: A("s_barrier")
        r = rd((ks+1) & 3, (ks+1) & 1); ri = 0
        for i, m in enumerate(mf(ks & 1)):
            A(m)
            for ins in r[ri:ri+pat[i]]: A(ins)
            ri += pat[i]
            for ins in extra[i]: A(ins)
    A("s_cbranch_scc1 G_loop")
    A("s_waitcnt lgkmcnt(0)")

def g_addr16(A, vxr, vwr, t0):
    t1, t2 = t0+1, t0+2; T = 32
    A(f"""v_and_b32 {v(t0)}, 15, v1
    v_lshrrev_b32 {v(t1)}, 4, v1
    v_bfe_u32 {v(t2)}, v1, 1, 3
    v_xor_b32 {v(t2)}, {v(t1)}, {v(t2)}
    v_lshlrev_b32 {v(t2)}, 4, {v(t2)}
    v_lshl_add_u32 {v(t2)}, {v(t0)}, 7, {v(t2)}
    s_and_b32 {s(T)}, s28, 1
    s_lshl_b32 {s(T)}, {s(T)}, 13
    v_add_u32 {v(vxr)}, {s(T)}, {v(t2)}
    v_xor_b32 {v(vxr+1)}, 64, {v(vxr)}
    v_and_b32 {v(t2)}, 1, {v(t1)}
    v_mul_u32_u24 {v(t1)}, 3072, {v(t1)}
    v_lshl_add_u32 {v(t1)}, {v(t2)}, 5, {v(t1)}
    v_bfe_u32 {v(t0)}, v1, 2, 2
    v_lshl_add_u32 {v(t1)}, {v(t0)}, 7, {v(t1)}
    v_lshrrev_b32 {v(t0)}, 1, {v(t0)}
    s_lshr_b32 {s(T)}, s28, 1
    v_xor_b32 {v(t0)}, {s(T)}, {v(t0)}
    v_lshl_add_u32 {v(t1)}, {v(t0)}, 6, {v(t1)}
    v_and_b32 {v(t0)}, 3, v1
    v_lshl_add_u32 {v(vwr)}, {v(t0)}, 3, {v(t1)}
    v_xor_b32 {v(vwr+1)}, 32, {v(vwr)}""")

def g_loop16(A, opt, acc, FB, vxr, vwr, at_loop=None):
    SD, SI, SS = 16, 17, 18
    def rd(ks, buf):
        b = FB + 40*buf
        w = [f"ds_read_b64_tr_b16 {v(b+16+(p*2+nn)*4+2*j,2)}, {v(vwr+nn)} offset:{WO + ks*12288 + p*1024 + j*512}" for p in range(3) for nn in range(2) for j in range(2)]
        x = [f"ds_read_b128 {v(b+4*j,4)}, {v(vxr+ks)} offset:{j*2048}" for j in range(4)]
        return w[:2] + x + w[2:]
    def mf(buf):
        b = FB + 40*buf; o = []
        od = opt.get('order', 'w')
        if od == 'w': seq = [(q, j) for q in range(6) for j in range(4)]
        elif od == 'wsnake': seq = [(q, j if q % 2 == 0 else 3-j) for q in range(6) for j in range(4)]
        elif od == 'x': seq = [(q, j) for j in range(4) for q in range(6)]
        elif od == 'xsnake': seq = [(q if j % 2 == 0 else 5-q, j) for j in range(4) for q in range(6)]
        elif od == 'aconst': seq = [(q, j if q % 2 == 0 else 3-j) for q in range(4) for j in range(4)] + [(4 + (q if j % 2 == 0 else 1-q), j) for j in range(4) for q in range(2)]
        elif od == 'bconst': seq = [(q if j % 2 == 0 else 3-q, j) for j in range(4) for q in range(4)] + [(q, j if q % 2 == 0 else 3-j) for q in (4, 5) for j in range(4)]
        elif od == 'diag': seq = [((i + i//6*0) % 6, i % 4) for i in range(12)] + [(i % 6, (i+1) % 4) for i in range(12)]
        assert len(set(seq)) == 24
        rg = a if opt.get('agpr') else v
        for q, j in seq:
            c = rg((0 if opt.get('agpr') else acc) + (q*4+j)*4, 4); x = v(b+4*j, 4); w = v(b+16+q*4, 4)
            o.append(f"v_mfma_f32_16x16x32_bf16 {c}, {w}, {x}, {c}" if q < 4 else f"v_mfma_f32_16x16x32_bf16 {c}, {x}, {w}, {c}")
        return o
    A(f"s_mov_b32 {s(SI)}, 0\ns_mov_b32 {s(SS)}, {opt.get('ss0', 0)}\ns_mov_b32 s19, {SLOT}")
    A("s_barrier")
    for n, ins in enumerate(rd(0, 0)):
        A(ins)
        if n == 12: A("s_waitcnt lgkmcnt(8)")
    if at_loop: at_loop(A)
    A.label('G_loop')
    for ks in range(2):
        extra = [[] for _ in range(24)]
        if ks == 0:
            extra[16] = [f"s_add_u32 {s(SS)}, {s(SS)}, 1", f"s_cmp_eq_u32 {s(SS)}, 3"]
            extra[17] = [f"s_cselect_b32 {s(SD)}, {(-2*SLOT) & 0xffffffff}, s19", f"s_cselect_b32 {s(SS)}, 0, {s(SS)}"]
            for q, r_ in enumerate((vxr, vxr+1, vwr, vwr+1)): extra[18+q] = [f"v_add_u32 {v(r_)}, {s(SD)}, {v(r_)}"]
        else: extra[20] = [f"s_add_u32 {s(SI)}, {s(SI)}, 1", f"s_cmp_lt_u32 {s(SI)}, 16"]
        A("s_waitcnt lgkmcnt(0)")
        if ks == 1: A("s_barrier")
        r = rd(1-ks, 1-ks)
        for i, m in enumerate(mf(ks)):
            A(m)
            if i < 16: A(r[i])
            if i == 13: A("s_waitcnt lgkmcnt(10)")
            for ins in extra[i]: A(ins)
    A("s_cbranch_scc1 G_loop")
    A("s_waitcnt lgkmcnt(0)")
```

```python
import sys, json
from asmlib import *
from common import *
from kgen import *
import loop2
from loop2 import ids, SLOT, XO, WO

TW = 8704
WPH = 4*TW
MISC = WPH + 4096
ZA, ONES, FLG = MISC, MISC + 1024, MISC + 1280
F_PAIR, C_WO, C_TAIL, C_PASS = FLG, FLG + 16, FLG + 20, FLG + 24
F_GO, C_K1, C_K2, C_O, C_Y, D_K1, D_K2, D_O = FLG + 32, FLG + 48, FLG + 52, FLG + 56, FLG + 60, FLG + 64, FLG + 68, FLG + 72
FP = 10
RING = 40960
P0, P1, P2 = RING, RING + SLOT, RING + 2*SLOT
UB = 163840 - 16384
PH = P1
VBO = 4352
WS_OF = WS_UF + 49152
WS_YF = WS_UF + 65536
WV, RB, HP, T = 28, 26, 27, 32
CB, M, CG, CH, QI, TB = RB, HP, 66, 67, 68, 69
VBA = (P1 + 32768, P1 + 36864, P2 + 16384, WPH)

def lds_wait(A, tag, vaddr, off, val, vt, cmp='eq'):
    A(f"s_mov_b32 s58, 0")
    A.label(f'{tag}_lw')
    A(f"""ds_read_b32 {v(vt)}, {v(vaddr)} offset:{off}
    s_add_u32 s58, s58, 1
    s_cmp_gt_u32 s58, {SPIN_MAX*4}
    s_cbranch_scc1 {tag}_lwok
    s_waitcnt lgkmcnt(0)
    v_cmp_{'ne' if cmp == 'eq' else 'gt'}_u32 vcc, {val}, {v(vt)}
    s_nop 4
    s_cbranch_vccz {tag}_lwok
    s_sleep 1
    s_branch {tag}_lw""")
    A.label(f'{tag}_lwok')
    A("s_waitcnt lgkmcnt(0)")

def arrive(A, tag, vz, vone, vt, cnt, nn, srdr, sflag, slast, n=4):
    A(f"""s_mov_b64 exec, 1
    ds_add_rtn_u32 {v(vt)}, {v(vz)}, {v(vone)} offset:{cnt}
    s_waitcnt lgkmcnt(0)
    v_readfirstlane_b32 {s(slast)}, {v(vt)}
    s_cmp_eq_u32 {s(slast)}, {n-1}
    s_cbranch_scc0 {tag}_arr
    buffer_store_dwordx2 {v(nn,2)}, {v(vz)}, {s(srdr,4)}, {s(sflag)} offen sc1""")
    A.label(f'{tag}_arr')
    A("s_mov_b64 exec, -1")

def depart(A, tag, vz, vone, voff, vt, done, nn, srdr, sline, slast, sleep, n=4):
    A(f"s_cmp_eq_u32 {s(slast)}, {n-1}\ns_cbranch_scc0 {tag}_oth")
    poll(A, tag, voff, srdr, sline, nn, vt, 58, sleep=sleep)
    A(f"ds_write_b32 {v(vz)}, {v(vone)} offset:{done}\ns_branch {tag}_go")
    A.label(f'{tag}_oth')
    lds_wait(A, tag, vz, done, 1, vt)
    A.label(f'{tag}_go')

def param_loads(P, off, nt):
    return [f"global_load_short_d16_hi {v(P+k)}, v10, {s(sp,2)} offset:{off}{nt}" for k, sp in enumerate((84, 86, 88, 90))] + [f"global_load_short_d16_hi {v(P+8)}, v11, s[92:93]"]

def ssm_ids(A):
    A(f"""
    s_lshl_b32 {s(CG)}, {s(CB)}, 4
    s_add_u32 {s(CG)}, {s(CG)}, {s(M)}
    s_lshl_b32 {s(CH)}, {s(CG)}, 2
    s_add_u32 {s(CH)}, {s(CH)}, {s(WV)}
    s_mul_i32 {s(TB)}, {s(WV)}, {TW}
    s_lshl_b32 {s(T)}, {s(CH)}, 8
    v_lshl_add_u32 v10, v1, 1, {s(T)}
    s_lshl_b32 {s(T+1)}, {s(CH)}, 1
    v_mov_b32 v11, {s(T+1)}""")

def kgen_addr(A, XA, YA, TB):
    A(f"""v_and_b32 v36, 31, v1
    v_lshrrev_b32 v37, 5, v1
    v_mul_u32_u24 v38, {TP}, v36
    v_lshl_add_u32 v38, v37, 4, v38
    v_add_u32 {v(YA)}, {s(TB)}, v38
    v_cmp_gt_u32 s[62:63], v36, 27
    v_subrev_u32 v39, {2*TP}, {v(YA)}
    v_cndmask_b32 {v(XA)}, {v(YA)}, v39, s[62:63]""")

def out_ids(A, opt, rbo, nb, ph):
    ar = opt.get('oarr', 4); lr = {2: 1, 4: 2, 8: 3}[ar]; xr = 4 - lr
    A(f"""s_and_b32 {s(rbo)}, s24, {(1<<xr)-1}
    s_lshl_b32 {s(rbo)}, {s(rbo)}, {lr}
    s_and_b32 {s(ph)}, s25, {ar-1}
    s_add_u32 {s(rbo)}, {s(rbo)}, {s(ph)}
    s_lshr_b32 {s(nb)}, s24, {xr}
    s_lshl_b32 {s(nb)}, {s(nb)}, {5-lr}
    s_lshr_b32 {s(T)}, s25, {lr}
    s_add_u32 {s(nb)}, {s(nb)}, {s(T)}
    s_add_u32 {s(ph)}, {s(ph)}, {s(T)}
    s_and_b32 {s(ph)}, {s(ph)}, {opt.get('oxm', 3)}
    s_lshl_b32 {s(ph)}, {s(ph)}, {opt.get('oxs', 1)}""")

def wo_addr(A, vd, t0, nb):
    A(f"""v_lshrrev_b32 {v(t0)}, 3, v1
    v_and_b32 {v(t0+1)}, 7, v1
    v_and_b32 {v(vd)}, 6, {v(t0)}
    v_xor_b32 {v(t0+1)}, {v(t0+1)}, {v(vd)}
    v_lshlrev_b32 {v(t0+1)}, 4, {v(t0+1)}
    v_lshl_add_u32 {v(t0+1)}, {v(t0)}, 11, {v(t0+1)}
    s_lshl_b32 {s(T)}, {s(nb)}, 7
    v_add_u32 {v(vd)}, {s(T)}, {v(t0+1)}""")

def wo_granule(vd, srdw, sstep, slds, ph):
    o = [f"s_xor_b32 {s(T)}, {s(sstep)}, {s(ph)}", f"s_lshl_b32 {s(T)}, {s(T)}, 16", f"s_mov_b32 m0, {s(slds)}"]
    for i in range(4):
        o.append(f"buffer_load_dwordx4 {v(vd)}, {s(srdw,4)}, {s(T)} offen offset:{i*1024} lds")
        if i < 3: o.append(f"s_add_u32 {s(T)}, {s(T)}, {16384-1024}")
    return o

def role_s(A, opt):
    RBO, NB, PHS = 70, 71, 72
    SU, SWS, SWO = 76, 40, 44
    L = loop2.Loader()
    if opt.get('sprio'): A(f"s_setprio {opt['sprio']}")
    L.setup(A, opt, 14)
    A(f"s_mov_b32 {s(L.ms)}, {P1}")
    def chunk():
        gs = L.chunk(opt)
        gs[-1] = [f"s_add_u32 {s(L.ms)}, {s(L.ms)}, {SLOT}", f"s_cmp_eq_u32 {s(L.ms)}, {RING+3*SLOT}", f"s_cselect_b32 {s(L.ms)}, {RING}, {s(L.ms)}"]
        gs[-2] = gs[-2] + gs[-1]
        return gs[:-1]
    order = []
    def emit(g, tag):
        for ins in g:
            A(ins)
            if ins.startswith('buffer_') or ins.startswith('global_'): order.append(tag)
    def wait(tag):
        last = len(order) - 1 - order[::-1].index(tag)
        A(f"s_waitcnt vmcnt({len(order) - 1 - last})")
    P = 232; NN = 10
    SL, SLL, SIT = 56, 57, 59
    DT, XA, YA = 34, 32, 33
    OUTV = (112, 170)
    nt = ' nt' if opt.get('nt') else ''
    jobs = {}
    def job(iv, pos, fn): jobs.setdefault((iv, pos), []).append(fn)
    def j_setup():
        ssm_ids(A)
        A(f"""s_lshl_b32 {s(QI)}, {s(M)}, 2
        s_add_u32 {s(QI)}, {s(QI)}, {s(WV)}
        v_lshrrev_b32 v12, 3, v1
        v_and_b32 v13, 7, v1
        v_lshlrev_b32 v13, 4, v13
        v_lshl_add_u32 v12, v12, 11, v13
        v_lshlrev_b32 v15, 4, v1
        v_mov_b32 v9, 0""")
        out_ids(A, opt, RBO, NB, PHS)
        for i in range(10): A(f"v_mov_b32 {v(P+i)}, 0")
        srd(A, SU, 82, 4194304); srd(A, SWS, 54, WS_SIZE); srd(A, SWO, 80, 2097152)
        emit(param_loads(P, 0, nt) + param_loads(P+4, 128, nt)[:4] + [f"global_load_short_d16_hi {v(P+9)}, v11, s[94:95]"], 'par')
    def j_uload():
        ug = [f"s_lshl_b32 {s(T)}, {s(QI)}, 16", f"s_lshl_b32 {s(T+1)}, {s(CB)}, 7", f"s_add_u32 {s(T)}, {s(T)}, {s(T+1)}", f"s_mov_b32 m0, {s(TB)}"]
        for i in range(4):
            ug.append(f"buffer_load_dwordx4 v12, {s(SU,4)}, {s(T)} offen offset:{i*1024}{nt} lds")
            if i < 3: ug.append(f"s_add_u32 {s(T)}, {s(T)}, {16384-1024}")
        emit(ug + [f"global_load_dwordx2 {v(NN,2)}, v9, s[52:53] sc1"], 'u')
    def j_utr():
        A(f"""v_bfe_u32 v16, v1, 2, 2
        v_lshrrev_b32 v17, 4, v1
        v_lshl_add_u32 v12, v16, 2, v17
        v_and_b32 v18, 3, v1
        v_lshlrev_b32 v19, 3, v18
        v_lshl_add_u32 v12, v12, 7, v19
        v_add_u32 v12, {s(TB)}, v12
        v_lshlrev_b32 v13, 14, v16
        v_lshl_add_u32 v13, v17, 6, v13
        v_xor_b32 v18, {s(WV)}, v18
        v_lshl_add_u32 v13, v18, 4, v13
        s_lshl_b32 s74, {s(CB)}, 18
        s_lshl_b32 {s(T+1)}, {s(QI)}, 8
        s_add_u32 s74, s74, {s(T+1)}
        s_add_u32 s74, s74, {WS_UT}
        s_lshl_b32 s63, {s(CB)}, {FP}
        s_add_u32 s63, s63, {WS_UF}
        s_lshl_b32 {s(T+1)}, {s(M)}, 3
        s_add_u32 s62, s63, {s(T+1)}
        v_and_b32 v14, 15, v1
        v_lshlrev_b32 v14, 3, v14""")
        wait('u')
        for z in range(4):
            for j in range(2):
                A(f"ds_read_b64_tr_b16 {v(16+4*z+2*j,2)}, v12 offset:{j*2048 + z*32}")
    def j_ust(z):
        def f():
            A("s_waitcnt lgkmcnt(0)")
            emit([f"buffer_store_dwordx4 {v(16+4*z,4)}, v13, {s(SWS,4)}, s74 offen sc1"], 'ut')
            A("s_add_u32 s74, s74, 65536")
        return f
    def j_uflag():
        get_nonce(A, 'S', NN, 9, 52, 60)
        A(f"s_cmp_eq_u32 {s(WV)}, 0\ns_cselect_b32 s60, s62, 0x7ffffff0\ns_mov_b64 exec, 1")
        emit([f"buffer_store_dwordx2 {v(NN,2)}, v9, {s(SWS,4)}, s60 offen sc1"], 'uf')
        A("s_mov_b64 exec, -1")
    def j_upoll(): emit([f"buffer_load_dwordx2 v[12:13], v14, {s(SWS,4)}, s63 offen sc1"], 'up')
    u0 = opt.get('u0', 4)
    job(1, 7, j_setup)
    job(u0, 0, j_uload); job(u0+2, 0, j_utr)
    ust = opt.get('ust', [(2, 3), (3, 0), (4, 0), (5, 0)])
    for z in range(4): job(u0 + ust[z][0], ust[z][1], j_ust(z))
    job(u0 + ust[3][0] + 2, 0, j_uflag)
    job(14, 0, j_upoll)
    pre = [f"s_mov_b32 {s(SL)}, {LOG2E}", f"s_mov_b32 {s(SLL)}, 0x32a57060"] + exp_bf16(DT, P+8, 36, 37, SL, SLL)
    k0_, xrows, row0 = kvals(P, DT, OUTV[0], SL, SLL, False)
    k1_, _, _ = kvals(P+4, DT, OUTV[1], SL, SLL, False)
    kp = pre + k0_ + k1_
    if opt.get('nok'): kp = []
    q0 = 30; qn = 160 - q0 + opt.get('qx', 10)
    leads = opt.get('leads', [7, 7]); leads = leads + [10]*(17-len(leads))
    stream = []
    for c in range(16): stream += chunk()
    pos = 0; kpos = 0
    for c in range(15):
        tgt = min(160, 10*(c+1) + leads[c])
        while pos < tgt:
            for fn in jobs.pop((pos//10, pos % 10), []):
                assert pos % 10 in (0, 3, 7); fn()
            emit(stream[pos], f'c{pos//10}'); pos += 1
            if pos == q0: wait('par')
            if pos >= q0:
                e = len(kp)*(pos - q0 + 1)//qn
                for ins in kp[kpos:e]: A(ins)
                kpos = e
        wait(f'c{c}'); A("s_barrier")
        if c in (0, 3, 6, 9, 12): stamp2(A, opt, {0: 1, 3: 8, 6: 9, 9: 10, 12: 11}[c])
    assert not jobs
    stamp2(A, opt, 2)
    A(f"""v_cmp_ne_u64 vcc, v[12:13], {v(NN,2)}
    s_nop 4
    s_cbranch_vccz SU_skip""")
    poll(A, 'SU', 14, SWS, 63, NN, 12, 60)
    A.label('SU_skip')
    A(f"""s_lshl_b32 {s(T)}, {s(CG)}, 14
    s_lshl_b32 {s(T+1)}, {s(WV)}, 12
    s_add_u32 {s(T)}, {s(T)}, {s(T+1)}
    s_add_u32 {s(T)}, {s(T)}, {WS_UT}
    s_add_u32 m0, {s(T+1)}, {UB}""")
    for i in range(4):
        A(f"buffer_load_dwordx4 v15, {s(SWS,4)}, {s(T)} offen offset:{i*1024} sc1 lds")
    for ins in kp[kpos:]: A(ins)
    kgen_addr(A, XA, YA, TB)
    wo_addr(A, 8, 36, NB)
    def pieces(first, n):
        A(f"s_lshl_b32 s61, {s(PHS)}, 2")
        for i in range(n):
            A(f"""s_add_u32 {s(T)}, {s(first)}, {i}
            s_lshl_b32 {s(T+1)}, {s(T)}, 10
            s_add_u32 m0, {s(T+1)}, {P0}
            s_xor_b32 {s(T)}, {s(T)}, s61
            s_lshl_b32 {s(T)}, {s(T)}, 14
            buffer_load_dwordx4 v8, {s(SWO,4)}, {s(T)} offen lds""")
    A(f"""v_mov_b32 v42, 0x3f80
    v_mov_b32 v28, 0
    v_mov_b32 v29, 0
    s_lshl_b32 {s(T)}, {s(WV)}, 9
    s_add_u32 {s(T)}, {s(T)}, {UB-2048}
    v_lshl_add_u32 v36, v1, 3, {s(T)}
    ds_write_b64 v36, v[28:29]
    v_mov_b32 v43, {v(P+9)}
    s_waitcnt vmcnt(4)
    s_barrier""")
    A(f"s_lshl_b32 s60, {s(WV)}, 2\ns_add_u32 s60, s60, 80"); pieces(60, 4)
    A("s_waitcnt vmcnt(4) lgkmcnt(0)\ns_barrier")
    if opt.get('sprio'): A("s_setprio 0")
    stamp2(A, opt, 3)
    A(f"s_mul_i32 s60, {s(WV)}, 10"); pieces(60, 10)
    ar = opt.get('oarr', 4); npf = 4 // ar if ar <= 4 else 1
    A(f"""s_and_b32 {s(T)}, {s(RBO)}, {min(ar,4)-1}
    s_lshl_b32 {s(T)}, {s(T)}, 2
    s_add_u32 {s(T)}, {s(T)}, {s(WV)}
    s_mul_i32 {s(T)}, {s(T)}, {npf << 17}
    s_lshl_b32 {s(T+1)}, {s(NB)}, 7
    s_add_u32 {s(T)}, {s(T)}, {s(T+1)}
    v_lshlrev_b32 v2, 11, v1""")
    for q in range(npf):
        A(f"buffer_load_dword {v(6+q)}, v2, {s(SWO,4)}, {s(T)} offen")
        if q + 1 < npf: A(f"s_add_u32 {s(T)}, {s(T)}, {1 << 17}")
    A(f"s_mov_b32 m0, {s(TB)}")
    stamp2(A, opt, 14)
    x0, y0, m0_ = klds(OUTV[0], xrows, row0, 42, XA, YA, 44, 76, 16, True)
    x1, y1, m1_ = klds(OUTV[1], xrows, row0, 42, XA, YA, 112, 44, 16, False)
    KA = 16
    for ins in x0 + y0 + x1[:12]: A(ins)
    A("s_waitcnt lgkmcnt(12)")
    for ins in interleave(m0_, x1[12:20]) + x1[20:]: A(ins)
    for ins in y1: A(ins)
    UA, KAD = 2, 3
    A(f"""v_bfe_u32 v36, v1, 2, 3
    v_lshrrev_b32 v37, 5, v1
    v_add3_u32 v36, v36, v37, -1
    v_and_b32 v38, 3, v36
    v_xor_b32 v38, {s(WV)}, v38
    v_lshlrev_b32 v38, 4, v38
    v_lshl_add_u32 v38, v36, 8, v38
    v_and_b32 v39, 3, v1
    v_lshl_add_u32 v38, v39, 6, v38
    v_add_u32 {v(UA)}, {UB}, v38
    v_bfe_u32 v36, v1, 4, 1
    v_lshl_add_u32 v36, v36, 2, v39
    v_bfe_u32 v38, v1, 2, 2
    v_sub_u32 v36, v36, v38
    v_lshlrev_b32 v37, 3, v37
    v_sub_u32 v36, v36, v37
    v_lshlrev_b32 v36, 3, v36
    s_add_u32 {s(T)}, {s(TB)}, {64 + 64 - 32}
    v_add_u32 {v(KAD)}, {s(T)}, v36""")
    for ks in range(8): A(f"s_waitcnt lgkmcnt({7-ks})\n" + m1_[ks])
    def expand():
        A(f"""v_cmp_eq_u32 s[60:61], 0, v1
        v_and_b32 v36, 1, v1
        v_cmp_eq_u32 s[62:63], 0, v36
        v_cndmask_b32 v43, 0, v43, s[60:61]
        v_and_b32 v36, 31, v1
        v_lshrrev_b32 v37, 5, v1
        v_lshlrev_b32 v38, 4, v36
        v_add_u32 v38, {s(TB)}, v38
        v_lshl_add_u32 v39, v37, 3, v38
        v_lshl_add_u32 v38, v37, 9, v38
        v_mov_b32 v60, 0
        v_mov_b32 v61, 0
        v_and_b32 v36, 15, v1
        v_lshlrev_b32 v36, 2, v36
        v_add_u32 v36, {s(TB)}, v36
        ds_write_b32 v36, v60
        v_add_f32 {v(KA)}, {v(KA)}, v43
        v_cndmask_b32 v40, {v(KA+11)}, {v(KA+10)}, s[62:63]
        v_cndmask_b32 v41, {v(KA+13)}, {v(KA+12)}, s[62:63]""")
        prs = [(0,1),(2,3),(4,4),(5,6),(7,7),(7,8),(8,8),(9,9),(10,10),(10,10),('v40',11),(11,11),(12,12),(12,12),('v41',13),(13,13)]
        for i, (p, q) in enumerate(prs):
            A(f"v_cvt_pk_bf16_f32 {v(44+i)}, {p if isinstance(p,str) else v(KA+p)}, {v(KA+q)}")
        A(f"""ds_write_b64 v39, v[44:45] offset:64
        ds_write_b64 v39, v[46:47] offset:{64+512}
        ds_write_b128 v38, v[48:51] offset:{64+1024}
        ds_write_b128 v38, v[52:55] offset:{64+2048}
        ds_write_b128 v38, v[56:59] offset:{64+3072}""")
    expand()
    stamp2(A, opt, 12)
    ACC, UF, KF = 64, 192, 224
    A("v_mov_b32 v62, 0\nv_mov_b32 v63, 0")
    for i in range(8): A(f"v_mfma_f32_32x32x16_bf16 {v(ACC+16*i,16)}, v[60:63], v[60:63], 0")
    A(f"s_lshl_b32 {s(T)}, {s(WV)}, 2\nv_mov_b32 v4, {s(T)}\nv_mov_b32 v5, 1")
    A(f"s_waitcnt vmcnt(0)\ns_mov_b64 exec, 1\nds_add_u32 v9, v5 offset:{C_WO}\ns_mov_b64 exec, -1")
    if not opt.get('nohold'): lds_wait(A, 'SH', 4, F_GO, 1, 6)
    stamp2(A, opt, 4)
    A(f"s_lshl_b32 s60, {s(WV)}, 1\ns_add_u32 s60, s60, 25\ns_add_u32 s61, {s(TB)}, {VBO}")
    for ins in wo_granule(8, SWO, 60, 61, PHS): A(ins)
    def rdU(t): return f"ds_read_b128 {v(UF+4*t,4)}, {v(UA)} offset:{t*2048}"
    def rdK(i): return [f"ds_read_b64_tr_b16 {v(KF+4*i+2*j,2)}, {v(KAD)} offset:{i*512 + (1-j)*32}" for j in range(2)]
    for sidx in range(8):
        A(rdU(7-sidx))
        for ins in rdK(sidx): A(ins)
        if sidx == 3: A("s_waitcnt lgkmcnt(3)")
    A(f"s_mov_b32 {s(SIT)}, 0")
    A.label('S_conv')
    A(f"""v_subrev_u32 {v(UA)}, 512, {v(UA)}
    v_add_u32 {v(KAD)}, 128, {v(KAD)}
    v_xor_b32 {v(UA)}, 32, {v(UA)}""")
    for i in range(8):
        for t in range(7-i, -1, -1):
            if i == 0 and t <= 5: A(f"s_waitcnt lgkmcnt({3*t})")
            if i == 0 and t == 7: A("s_waitcnt lgkmcnt(15)")
            c = v(ACC+16*(i+t), 16)
            A(f"v_mfma_f32_32x32x16_bf16 {c}, {v(UF+4*t,4)}, {v(KF+4*i,4)}, {c}")
        A(rdU(7-i))
        for ins in rdK(i): A(ins)
    A(f"s_add_u32 {s(SIT)}, {s(SIT)}, 1\ns_cmp_lt_u32 {s(SIT)}, 4\ns_cbranch_scc1 S_conv")
    A("s_waitcnt lgkmcnt(0)")
    stamp2(A, opt, 5)
    A(f"s_lshl_b32 s60, {s(WV)}, 1\ns_add_u32 s60, s60, 24")
    for ins in wo_granule(8, SWO, 60, TB, PHS): A(ins)
    A(f"""s_mov_b32 s60, 0
    s_mov_b32 s61, 0x80000000
    s_mov_b32 s62, 0
    s_mov_b32 s63, 0xc0000000
    s_mov_b32 s74, 0
    s_mov_b32 s75, 0xe0000000
    v_lshrrev_b32 v4, 2, v1
    v_and_b32 v6, 3, v1
    v_lshlrev_b32 v6, 4, v6
    v_lshl_add_u32 v4, v4, 12, v6
    s_lshl_b32 {s(T)}, {s(CB)}, 18
    s_and_b32 {s(T+1)}, {s(CH)}, 63
    s_lshl_b32 {s(T+1)}, {s(T+1)}, 6
    s_add_u32 {s(T)}, {s(T)}, {s(T+1)}
    s_add_u32 {s(T)}, {s(T)}, {WS_YT + 3*65536}""")
    DPP = "wave_ror:1 row_mask:0xf bank_mask:0xf"
    msk = {1: 60, 2: 62, 3: 74}
    for z in range(3, -1, -1):
        for half in (1, 0):
            Gs = [8*z + 4*half + g for g in (3, 2, 1, 0)]
            for rho in (3, 2, 1):
                for G in Gs:
                    r = ACC + 4*G + rho
                    A(f"v_cndmask_b32 {v(r)}, {v(r)}, {v(r-4) if G > 0 else 0}, {s(msk[rho],2)}")
            for rho in (2, 1, 0):
                for G in Gs:
                    r = ACC + 4*G + rho
                    A(f"v_add_f32_dpp {v(r)}, {v(r+1)}, {v(r)} {DPP}")
            for pr in (1, 0):
                G = 8*z + 4*half + 2*pr
                A(f"v_cvt_pk_bf16_f32 {v(16+4*z+2*half+pr)}, {v(ACC+4*G)}, {v(ACC+4*G+4)}")
        if z == 1: A(f"s_waitcnt vmcnt(0)\ns_mov_b64 exec, 1\nds_add_u32 v9, v5 offset:{C_TAIL}\ns_mov_b64 exec, -1")
    stamp2(A, opt, 13)
    if not opt.get('ynohold'): lds_wait(A, 'SO', 9, C_Y, 4, 6)
    for z in range(3, -1, -1):
        A(f"buffer_store_dwordx4 {v(16+4*z,4)}, v4, {s(SWS,4)}, {s(T)} offen sc1")
        if z: A(f"s_sub_u32 {s(T)}, {s(T)}, 65536")
        if z and opt.get('yspread'): A(f"s_sleep {opt['yspread']}")
    A(f"""s_lshl_b32 {s(T)}, {s(RB)}, {FP}
    s_lshl_b32 {s(T+1)}, {s(HP)}, 3
    s_add_u32 {s(T)}, {s(T)}, {s(T+1)}
    s_add_u32 s63, {s(T)}, {WS_OF}
    s_lshl_b32 {s(T)}, {s(RBO)}, {FP}
    s_add_u32 s62, {s(T)}, {WS_OF}
    s_waitcnt vmcnt(0)""")
    arrive(A, 'SY', 9, 5, 12, C_O, NN, SWS, 63, 73, 8)
    stamp2(A, opt, 6)
    depart(A, 'SY', 9, 5, 14, 12, D_O, NN, SWS, 62, 73, opt.get('gsleep', 1), 8)
    if opt.get('ydelay'): lds_wait(A, 'SD', 9, C_PASS, opt['ydelay'], 6, cmp='ge')
    stamp2(A, opt, 7)
    A(f"""s_lshl_b32 {s(T)}, {s(RBO)}, 4
    s_add_u32 {s(T)}, {s(T)}, {s(NB)}
    s_lshl_b32 {s(T)}, {s(T)}, 14
    s_lshl_b32 {s(T+1)}, {s(WV)}, 12
    s_add_u32 {s(T)}, {s(T)}, {s(T+1)}
    s_add_u32 {s(T)}, {s(T)}, {WS_YT}
    s_mul_i32 s60, {s(WV)}, 4352
    s_add_u32 s60, s60, {UB-2048}""")
    for i in range(4):
        A(f"s_add_u32 m0, s60, {i*64}\nbuffer_load_dwordx4 v15, {s(SWS,4)}, {s(T)} offen offset:{i*1024} sc1 lds")
    srd(A, SU, 50, 8388608)
    A(f"""v_and_b32 v6, 7, v1
    v_lshrrev_b32 v7, 1, v6
    v_lshlrev_b32 v7, 6, v7
    v_lshl_add_u32 v7, v6, 9, v7
    v_lshrrev_b32 v12, 3, v1
    v_lshl_add_u32 v7, v12, 3, v7
    v_add_u32 v7, s60, v7
    v_and_b32 v12, 1, v12
    v_lshlrev_b32 v12, 20, v12
    v_lshrrev_b32 v13, 4, v1
    v_lshl_add_u32 v12, v13, 12, v12
    v_lshl_add_u32 v12, v6, 4, v12
    s_lshl_b32 {s(T)}, {s(RBO)}, 7
    s_lshr_b32 {s(T+1)}, {s(NB)}, 2
    s_lshl_b32 {s(T+1)}, {s(T+1)}, 21
    s_add_u32 {s(T)}, {s(T)}, {s(T+1)}
    s_and_b32 {s(T+1)}, {s(NB)}, 3
    s_lshl_b32 {s(T+1)}, {s(T+1)}, 2
    s_add_u32 {s(T+1)}, {s(T+1)}, {s(WV)}
    s_lshl_b32 {s(T+1)}, {s(T+1)}, 14
    s_add_u32 {s(T)}, {s(T)}, {s(T+1)}
    s_add_u32 {s(T)}, {s(T)}, 2048
    s_mov_b32 s60, 0x05040100
    s_mov_b32 s61, 0x07060302
    s_waitcnt vmcnt(0)""")
    for c in range(8): A(f"ds_read_b64 {v(96+2*c,2)}, v7 offset:{c*64}")
    A("s_waitcnt lgkmcnt(0)")
    for i in range(4):
        for cp in range(4):
            A(f"v_perm_b32 {v(112+4*i+cp)}, {v(96+4*cp+2+(i>>1))}, {v(96+4*cp+(i>>1))}, {s(60+(i&1))}")
        A(f"buffer_store_dwordx4 {v(112+4*i,4)}, v12, {s(SU,4)}, {s(T)} offen{opt.get('ofl','')}")
        if i < 3: A(f"s_add_u32 {s(T)}, {s(T)}, {64*4096}")
    stamp2_end(A, opt, SWS, 1)
    A("s_endpgm")

def stamp2(A, opt, i):
    if opt.get('stamps'):
        A(f"s_memrealtime s[96:97]\ns_waitcnt lgkmcnt(0)\nv_writelane_b32 {v(opt['_sv'])}, s96, {i}")
def stamp2_end(A, opt, srdr, role):
    if not opt.get('stamps'): return
    A("s_waitcnt vmcnt(0)")
    stamp2(A, opt, 15)
    A(f"""s_lshl_b32 s96, s2, 8
    s_lshl_b32 s97, {s(WV)}, 6
    s_add_u32 s96, s96, s97
    s_add_u32 s96, s96, {WS_ST + role*65536}
    v_lshlrev_b32 v2, 2, v1
    s_mov_b64 exec, 0xffff
    buffer_store_dword {v(opt['_sv'])}, v2, {s(srdr,4)}, s96 offen
    s_waitcnt vmcnt(0)""")

def cvt_swap(dst, ta, tb):
    return ([f"v_cvt_pk_bf16_f32 {v(dst)}, {v(ta)}, {v(ta+1)}", f"v_cvt_pk_bf16_f32 {v(dst+1)}, {v(ta+2)}, {v(ta+3)}",
             f"v_cvt_pk_bf16_f32 {v(dst+2)}, {v(tb)}, {v(tb+1)}", f"v_cvt_pk_bf16_f32 {v(dst+3)}, {v(tb+2)}, {v(tb+3)}"],
            [f"v_permlane16_swap_b32 {v(dst)}, {v(dst+2)}", f"v_permlane16_swap_b32 {v(dst+1)}, {v(dst+3)}"])

def exps(P, E, t, SL, pk):
    b = []
    mx, mn = t, t+2
    b.append(f"v_max3_f32 {v(mx)}, {v(P)}, {v(P+1)}, {v(P+2)}")
    b.append(f"v_min3_f32 {v(mn)}, {v(P)}, {v(P+1)}, {v(P+2)}")
    for i in range(3, 15, 2):
        b.append(f"v_max3_f32 {v(mx)}, {v(mx)}, {v(P+i)}, {v(P+i+1)}")
        b.append(f"v_min3_f32 {v(mn)}, {v(mn)}, {v(P+i)}, {v(P+i+1)}")
    b += [f"v_max_f32 {v(mx)}, {v(mx)}, {v(P+15)}", f"v_min_f32 {v(mn)}, {v(mn)}, {v(P+15)}",
          f"v_mul_f32 {v(mx)}, 0xbfb8aa3b, {v(mx)}", f"v_mul_f32 {v(mn)}, {LOG2E}, {v(mn)}",
          f"v_permlane32_swap_b32 {v(mx)}, {v(mn)}", f"v_min_f32 {v(mx)}, {v(mx)}, {v(mn)}",
          f"v_mov_b32 {v(mn)}, {v(mx)}", f"v_permlane32_swap_b32 {v(mx)}, {v(mn)}"]
    for i in range(0, 16, 2):
        if pk:
            b.append(f"v_pk_fma_f32 {v(E+i,2)}, {v(P+i,2)}, {s(SL,2)}, {v(mn,2)} op_sel_hi:[1,1,0] neg_lo:[1,0,0] neg_hi:[1,0,0]")
            b.append(f"v_pk_fma_f32 {v(P+i,2)}, {v(P+i,2)}, {s(SL,2)}, {v(mx,2)} op_sel_hi:[1,1,0]")
        else:
            for q in (i, i+1):
                b.append(f"v_fma_f32 {v(E+q)}, -{v(P+q)}, {s(SL)}, {v(mn)}")
                b.append(f"v_fma_f32 {v(P+q)}, {v(P+q)}, {s(SL)}, {v(mx)}")
    return b

def k_tail(P, E, out, t):
    b = []
    sp, sm = t+4, t+6
    for i in range(0, 16, 2):
        b += [f"v_exp_f32 {v(P+i)}, {v(P+i)}", f"v_exp_f32 {v(P+i+1)}, {v(P+i+1)}",
              f"v_exp_f32 {v(E+i)}, {v(E+i)}", f"v_exp_f32 {v(E+i+1)}, {v(E+i+1)}"]
        if i == 4:
            b += [f"v_pk_add_f32 {v(sp,2)}, {v(P,2)}, {v(P+2,2)}", f"v_pk_add_f32 {v(sm,2)}, {v(E,2)}, {v(E+2,2)}"]
        elif i > 4:
            b += [f"v_pk_add_f32 {v(sp,2)}, {v(sp,2)}, {v(P+i-2,2)}", f"v_pk_add_f32 {v(sm,2)}, {v(sm,2)}, {v(E+i-2,2)}"]
    b += [f"v_pk_add_f32 {v(sp,2)}, {v(sp,2)}, {v(P+14,2)}", f"v_pk_add_f32 {v(sm,2)}, {v(sm,2)}, {v(E+14,2)}"]
    b += [f"v_add_f32 {v(sp)}, {v(sp)}, {v(sp+1)}", f"v_add_f32 {v(sm)}, {v(sm)}, {v(sm+1)}",
          f"v_permlane32_swap_b32 {v(sp)}, {v(sm)}", f"v_add_f32 {v(sp)}, {v(sp)}, {v(sm)}",
          f"v_rcp_f32 {v(sp)}, {v(sp)}", f"v_mov_b32 {v(sm)}, {v(sp)}", f"v_permlane32_swap_b32 {v(sp)}, {v(sm)}"]
    for i in range(0, 16, 2):
        b.append(f"v_pk_mul_f32 {v(P+i,2)}, {v(P+i,2)}, {v(sp,2)} op_sel_hi:[1,0]")
        b.append(f"v_pk_mul_f32 {v(E+i,2)}, {v(E+i,2)}, {v(sm,2)} op_sel_hi:[1,0]")
    return b + cvts(P, E, out)

def cvts(P, E, out):
    b = []
    for i in range(8):
        b.append(f"v_cvt_pk_bf16_f32 {v(out+i)}, {v(P+2*i)}, {v(P+2*i+1)}")
        b.append(f"v_cvt_pk_bf16_f32 {v(out+8+i)}, {v(E+2*i)}, {v(E+2*i+1)}")
    return b

def q_tail(P, E, out):
    b = []
    for i in range(16): b += [f"v_exp_f32 {v(P+i)}, {v(P+i)}", f"v_exp_f32 {v(E+i)}, {v(E+i)}"]
    return b + cvts(P, E, out)

def role_g(A, opt):
    SWS, SWO, SL = 40, 44, 56
    HEAD, LAST = 73, 74
    RBO, NB, PHS = 70, 71, 72
    WP = 18; NN = 28; Z = 26
    A.label('G_entry')
    if opt.get('gprio'): A(f"s_setprio {opt['gprio']}")
    A("s_memrealtime s[60:61]")
    if opt.get('cpf'):
        A("s_getpc_b64 s[62:63]")
        A.label('G_pc')
        A(f"""s_sub_u32 s62, s62, G_pc-K_start
        s_subb_u32 s63, s63, 0
        v_lshlrev_b32 v14, 7, v0
        v_min_u32 v14, K_end-K_start, v14""")
        if opt['cpf'] == 2: A("s_lshr_b32 s32, s2, 3\ns_and_b32 s32, s32, 3\ns_cmp_eq_u32 s32, s28\ns_cbranch_scc0 G_nocpf")
        A("global_load_dword v2, v14, s[62:63]")
        A.label('G_nocpf')
    A(f"""v_mov_b32 {v(Z)}, 0
    v_lshlrev_b32 v30, 4, v1
    s_lshr_b32 {s(T)}, {s(WV)}, 1
    s_lshl_b32 {s(T+1)}, {s(HP)}, 1
    s_add_u32 {s(HEAD)}, {s(T)}, {s(T+1)}
    s_lshl_b32 {s(T+1)}, {s(T)}, 11
    s_add_u32 {s(T+1)}, {s(T+1)}, {WPH}
    s_mov_b32 m0, {s(T+1)}
    s_lshl_b32 {s(T)}, {s(HEAD)}, 11
    s_waitcnt lgkmcnt(0)""")
    srd(A, 76, 36, 65536)
    A(f"""buffer_load_dwordx4 v30, s[76:79], {s(T)} offen lds
    buffer_load_dwordx4 v30, s[76:79], {s(T)} offen offset:1024 lds
    s_add_u32 {s(T)}, s2, {s(WV)}
    s_cmp_eq_u32 {s(T)}, 0
    s_cbranch_scc0 G_nononce
    s_or_b32 s61, s61, 0x40000000
    v_mov_b32 {v(NN)}, s60
    v_mov_b32 {v(NN+1)}, s61
    s_mov_b64 exec, 1
    global_store_dwordx2 {v(Z)}, {v(NN,2)}, s[52:53] sc1
    s_mov_b64 exec, -1""")
    A.label('G_nononce')
    srd(A, SWS, 54, WS_SIZE); srd(A, SWO, 80, 2097152)
    out_ids(A, opt, RBO, NB, PHS)
    A(f"""v_lshrrev_b32 v14, 5, v1
    v_bfe_u32 v15, v1, 2, 2
    v_lshl_add_u32 v14, v14, 3, v15
    v_bfe_u32 v15, v1, 4, 1
    v_lshlrev_b32 v15, 5, v15
    v_lshl_add_u32 v14, v14, 6, v15
    v_and_b32 v15, 3, v1
    v_lshl_add_u32 v31, v15, 3, v14
    v_add_u32 v17, {s(T+1)}, v31""")
    wo_addr(A, 8, 14, NB)
    ACC = 64
    loop2.g_addr16(A, 9, 12, 14)
    for r in (9, 10, 12, 13): A(f"v_add_u32 {v(r)}, {P1}, {v(r)}")
    for i in range(96): A(f"v_mov_b32 {v(ACC+i)}, 0")
    A(f"""v_lshlrev_b32 v51, 2, v1
    v_mov_b32 v14, 1.0
    ds_write_b32 v51, v14 offset:{ONES}
    ds_write_b32 v51, {v(Z)} offset:{FLG}""")
    A(f"""v_and_b32 v14, 31, v1
    v_lshrrev_b32 v15, 5, v1
    v_bfe_u32 v16, v1, 2, 3
    v_xor_b32 v16, v15, v16
    v_lshlrev_b32 v16, 3, v16
    v_lshl_add_u32 v16, v14, 6, v16
    s_lshr_b32 {s(T)}, {s(WV)}, 1
    s_lshl_b32 {s(T)}, {s(T)}, 14
    s_and_b32 {s(T+2)}, {s(WV)}, 1
    s_lshl_b32 {s(T+2)}, {s(T+2)}, 12
    s_add_u32 {s(T)}, {s(T)}, {s(T+2)}
    s_add_u32 {s(T)}, {s(T)}, {PH}
    v_add_u32 v52, {s(T)}, v16
    v_xor_b32 v53, 16, v52
    v_xor_b32 v54, 32, v52
    v_xor_b32 v55, 48, v52
    v_lshlrev_b32 v15, 4, v15
    v_xor_b32 v15, v15, v31
    s_lshl_b32 {s(T)}, {s(WV)}, 13
    s_add_u32 {s(T)}, {s(T)}, {PH}
    v_add_u32 v56, {s(T)}, v15
    v_xor_b32 v57, 8, v56
    v_xor_b32 v58, 32, v56
    v_xor_b32 v59, 40, v56
    s_mov_b32 {s(T)}, {VBA[0]}
    s_mov_b32 {s(T+1)}, {VBA[1]}
    s_cmp_ge_u32 {s(WV)}, 2
    s_cselect_b32 {s(T)}, {VBA[2]}, {s(T)}
    s_cselect_b32 {s(T+1)}, {VBA[3]}, {s(T+1)}
    v_add_u32 v7, {s(T)}, v30
    v_add_u32 v3, {s(T+1)}, v30
    s_bitcmp1_b32 {s(WV)}, 0
    s_cselect_b32 {s(T)}, {s(T+1)}, {s(T)}
    v_add_u32 v50, {s(T)}, v30
    s_lshl_b32 {s(T)}, {s(WV)}, 2
    v_mov_b32 v4, {s(T)}
    v_xor_b32 v6, 4, v4
    v_mov_b32 v5, 1
    v_mov_b32 v60, 0x3f803f80
    v_mov_b32 v61, 0x3f803f80
    v_mov_b32 v62, 0x3f803f80
    v_mov_b32 v63, 0x3f803f80
    s_mov_b32 {s(SL)}, {LOG2E}
    s_mov_b32 {s(SL+1)}, {LOG2E}
    s_waitcnt vmcnt(0)""")
    for t in range(2):
        for j in range(2):
            A(f"ds_read_b64_tr_b16 {v(WP+4*t+2*j,2)}, v17 offset:{t*1024+j*256}")
    A("s_waitcnt lgkmcnt(0)")
    o2 = dict(opt); o2['ss0'] = 1
    loop2.g_loop16(A, o2, ACC, 160, 9, 12, at_loop=lambda A: (stamp2(A, opt, 1), opt.get('stamps') and A('s_memtime s[98:99]\ns_waitcnt lgkmcnt(0)')))
    stamp2(A, opt, 2)
    if opt.get('stamps'): A('s_memtime s[96:97]\ns_waitcnt lgkmcnt(0)\ns_sub_u32 s96, s96, s98\nv_writelane_b32 v27, s96, 14')
    if opt.get('gprio2'): A(f"s_setprio {opt['gprio2']}")
    A(f"global_load_dwordx2 {v(NN,2)}, {v(Z)}, s[52:53] sc1")
    tile = lambda p, nn, j: ACC + ((2*p+nn)*4+j)*4
    OUT = (224, 240); PP = (160, 192); EE = (176, 208); TT = (34, 42)
    def pre(p):
        cv, sw, mf = [], [], []
        for jj in range(2):
            for nn in range(2):
                c_, s_ = cvt_swap(OUT[jj]+4*nn, tile(p, nn, 2*jj), tile(p, nn, 2*jj+1)); cv.append(c_); sw.append(s_)
            mf.append([f"v_mfma_f32_32x32x16_bf16 {v(PP[jj],16)}, {v(WP,4)}, {v(OUT[jj],4)}, 0",
                       f"v_mfma_f32_32x32x16_bf16 {v(PP[jj],16)}, {v(WP+4,4)}, {v(OUT[jj]+4,4)}, {v(PP[jj],16)}"])
        return cv[0] + cv[1] + sw[0] + cv[2] + sw[1] + cv[3][:2], mf[0], cv[3][2:] + sw[2] + sw[3], mf[1]
    for part in pre(1):
        for ins in part: A(ins)
    VB = 96
    sws = []
    for j in range(4):
        c_, s_ = cvt_swap(VB+4*j, tile(2, 0, j), tile(2, 1, j))
        for ins in c_ + sws: A(ins)
        sws = s_
    kb = interleave(exps(PP[0], EE[0], TT[0], SL, True) + k_tail(PP[0], EE[0], OUT[0], TT[0]),
                    exps(PP[1], EE[1], TT[1], SL, True) + k_tail(PP[1], EE[1], OUT[1], TT[1]))
    for ins in kb[:2] + sws: A(ins)
    ncv = 32
    for ins in kb[2:-ncv-32]: A(ins)
    stamp2(A, opt, 12)
    for i in range(4):
        A(f"ds_write_b128 v50, {v(VB+4*i,4)} offset:{i*1024}")
        for ins in kb[-ncv-32+8*i:-ncv-24+8*i]: A(ins)
    tailc = kb[-ncv:]
    for q in range(4):
        for ins in tailc[8*q:8*q+8]: A(ins)
        for jj in range(2):
            for sg_ in range(2):
                A(f"ds_write_b64 {v(52+q)}, {v(OUT[jj]+8*sg_+2*q,2)} offset:{sg_*8192 + jj*2048}")
    A(f"ds_write_b32 v4, v5 offset:{F_PAIR}")
    qp = pre(0)
    A("s_waitcnt lgkmcnt(0)")
    for ins in qp[0] + qp[2]: A(ins)
    lds_wait(A, 'GP', 6, F_PAIR, 1, 14)
    stamp2(A, opt, 13)
    TF, VF, KV, ZZ = 160, 192, 96, 112
    for st in range(8):
        t = st & 1
        for j in range(2):
            A(f"ds_read_b64_tr_b16 {v(TF+4*st+2*j,2)}, {v(56+2*t+j)} offset:{st*1024 + j*256}")
        A(f"ds_read_b128 {v(VF+4*st,4)}, {v(3 if st >> 2 else 7)} offset:{(st&3)*1024}")
        if st == 4: A("s_waitcnt lgkmcnt(6)")
    A(f"""s_lshl_b32 {s(T)}, {s(HP)}, 4
    s_add_u32 {s(T)}, {s(T)}, {s(RB)}
    s_lshl_b32 {s(T)}, {s(T)}, 2
    s_add_u32 {s(T)}, {s(T)}, {s(WV)}
    s_lshl_b32 {s(T)}, {s(T)}, 12
    s_add_u32 s60, {s(T)}, {WS_P1}
    s_lshl_b32 {s(T)}, {s(HEAD)}, 4
    s_add_u32 {s(T)}, {s(T)}, {s(RB)}
    s_lshl_b32 {s(T)}, {s(T)}, 1
    s_and_b32 {s(T+1)}, {s(WV)}, 1
    s_add_u32 {s(T)}, {s(T)}, {s(T+1)}
    s_lshl_b32 {s(T)}, {s(T)}, 7
    s_add_u32 s61, {s(T)}, {WS_Z}""")
    for st in range(8):
        if st >= 3: A(f"s_waitcnt lgkmcnt({3*(7-st)})")
        A(f"v_mfma_f32_32x32x16_bf16 {v(KV,16)}, {v(TF+4*st,4)}, {v(VF+4*st,4)}, {v(KV,16) if st else 0}")
    for st in range(8):
        A(f"v_mfma_f32_32x32x16_bf16 {v(ZZ,16)}, v[60:63], {v(TF+4*st,4)}, {v(ZZ,16) if st else 0}")
        if st >= 4: A(f"buffer_store_dwordx4 {v(KV+4*(st-4),4)}, v30, {s(SWS,4)}, s60 offen offset:{(st-4)*1024} sc1")
    for ins in qp[1] + qp[3]: A(ins)
    A(f"ds_write_b32 v4, v5 offset:{F_GO}")
    A(f"""s_mov_b32 exec_hi, 0
    buffer_store_dword {v(ZZ)}, v51, {s(SWS,4)}, s61 offen sc1
    s_mov_b32 exec_hi, -1""")
    stamp2(A, opt, 3)
    qb = interleave(exps(PP[0], EE[0], TT[0], SL, False) + q_tail(PP[0], EE[0], OUT[0]),
                    exps(PP[1], EE[1], TT[1], SL, False) + q_tail(PP[1], EE[1], OUT[1]))
    n1 = opt.get('qsplit', 110)
    for ins in qb[:n1]: A(ins)
    A("s_waitcnt vmcnt(0)")
    get_nonce(A, 'G', NN, Z, 52, 58)
    A(f"""s_lshl_b32 s62, {s(HP)}, {FP}
    s_add_u32 s62, s62, {WS_KF1}
    s_lshl_b32 {s(T)}, {s(RB)}, 3
    s_add_u32 s63, s62, {s(T)}""")
    arrive(A, 'G1', Z, 5, 16, C_K1, NN, SWS, 63, LAST)
    def late_ph():
        for q in range(2):
            A(f"s_lshl_b32 s60, {s(WV)}, 1\ns_add_u32 s60, s60, {10+q}\ns_lshl_b32 s61, s60, 12\ns_add_u32 s61, s61, {P0}")
            for ins in wo_granule(8, SWO, 60, 61, PHS): A(ins)
    if opt.get('latepos', 0) == 0: late_ph()
    for ins in qb[n1:]: A(ins)
    stamp2(A, opt, 4)
    A("v_and_b32 v14, 15, v1\nv_lshlrev_b32 v14, 3, v14")
    depart(A, 'G1', Z, 5, 14, 16, D_K1, NN, SWS, 62, LAST, opt.get('gsleep', 1))
    stamp2(A, opt, 5)
    A(f"""s_lshl_b32 {s(T)}, {s(HP)}, 18
    s_lshl_b32 {s(T+1)}, {s(WV)}, 12
    s_add_u32 {s(T)}, {s(T)}, {s(T+1)}
    s_lshl_b32 {s(T+1)}, {s(RB)}, 8
    s_add_u32 {s(T)}, {s(T)}, {s(T+1)}
    s_add_u32 {s(T)}, {s(T)}, {WS_P1}""")
    for p in range(16):
        A(f"buffer_load_dword {v(64+p)}, v51, {s(SWS,4)}, {s(T)} offen sc1")
        if p < 15: A(f"s_add_u32 {s(T)}, {s(T)}, 16384")
    A(f"s_lshl_b32 {s(T)}, {s(HEAD)}, 12\ns_add_u32 {s(T)}, {s(T)}, {WS_Z}")
    for p in range(16):
        A(f"buffer_load_dword {v(80+p)}, v51, {s(SWS,4)}, {s(T)} offen offset:{p*256} sc1")
    def tree(b):
        o = []
        for w_ in (8, 4, 2, 1):
            for i in range(w_): o.append(f"v_add_f32 {v(b+i)}, {v(b+i)}, {v(b+w_+i)}")
        return o
    A(f"""s_lshl_b32 {s(T)}, {s(HP)}, 2
    s_add_u32 {s(T)}, {s(T)}, {s(WV)}
    s_lshl_b32 {s(T)}, {s(T)}, 11
    s_lshr_b32 {s(T+1)}, {s(RB)}, 3
    s_lshl_b32 {s(T+1)}, {s(T+1)}, 10
    s_add_u32 {s(T)}, {s(T)}, {s(T+1)}
    s_and_b32 {s(T+1)}, {s(RB)}, 3
    s_lshl_b32 {s(T+1)}, {s(T+1)}, 8
    s_add_u32 {s(T)}, {s(T)}, {s(T+1)}
    s_and_b32 {s(T+1)}, {s(RB)}, 4
    s_lshl_b32 {s(T+1)}, {s(T+1)}, 1
    s_add_u32 {s(T)}, {s(T)}, {s(T+1)}
    s_add_u32 {s(T)}, {s(T)}, {WS_P2}
    v_lshrrev_b32 v15, 2, v1
    v_lshlrev_b32 v15, 4, v15
    s_mov_b32 s60, 0x11111111
    s_mov_b32 s61, 0x11111111
    s_waitcnt vmcnt(16)""")
    for ins in tree(64): A(ins)
    A(f"""v_mov_b32_dpp v65, v64 quad_perm:[1,0,3,2] row_mask:0xf bank_mask:0xf
    v_cvt_pk_bf16_f32 v66, v64, v65
    v_mov_b32_dpp v67, v66 quad_perm:[2,3,0,1] row_mask:0xf bank_mask:0xf
    s_mov_b64 exec, s[60:61]
    buffer_store_dwordx2 v[66:67], v15, {s(SWS,4)}, {s(T)} offen sc1
    s_mov_b64 exec, -1
    s_waitcnt vmcnt(1)""")
    for ins in tree(80): A(ins)
    A(f"""s_lshl_b32 {s(T)}, {s(WV)}, 8
    s_add_u32 {s(T)}, {s(T)}, {ZA}
    v_add_u32 v15, {s(T)}, v51
    ds_write_b32 v15, v80
    v_mov_b32 v15, {s(T)}
    v_mov_b32 v16, {ONES}
    s_mov_b32 s60, 0xff00ff00
    s_mov_b32 s61, 0xff00ff00
    v_cndmask_b32 v15, v15, v16, s[60:61]
    v_lshrrev_b32 v16, 5, v1
    v_lshl_add_u32 v15, v16, 4, v15""")
    for i in range(8): A(f"ds_read_b128 {v(64+4*i,4)}, v15 offset:{i*32}")
    A(f"s_add_u32 s62, s62, {WS_KF2-WS_KF1}\ns_add_u32 s63, s63, {WS_KF2-WS_KF1}\ns_waitcnt vmcnt(0)")
    arrive(A, 'G2', Z, 5, 16, C_K2, NN, SWS, 63, LAST)
    stamp2(A, opt, 6)
    if opt.get('latepos', 0) == 1: late_ph()
    A(f"s_lshl_b32 s61, {s(PHS)}, 2")
    for i in range(2):
        A(f"""s_lshl_b32 {s(T)}, {s(WV)}, 1
        s_add_u32 {s(T)}, {s(T)}, {72+i}
        s_lshl_b32 {s(T+1)}, {s(T)}, 10
        s_add_u32 m0, {s(T+1)}, {P0}
        s_xor_b32 {s(T)}, {s(T)}, s61
        s_lshl_b32 {s(T)}, {s(T)}, 14
        buffer_load_dwordx4 v8, {s(SWO,4)}, {s(T)} offen lds""")
    ZF = 128
    A("s_waitcnt lgkmcnt(0)")
    for i in range(16): A(f"v_cvt_pk_bf16_f32 {v(ZF+i)}, {v(64+2*i)}, {v(65+2*i)}")
    DN = ((64, 80), (96, 112))
    for jj in range(2):
        for sg_ in range(2):
            for t in range(2):
                f = 2*sg_ + t; d = v(DN[jj][sg_], 16)
                A(f"v_mfma_f32_32x32x16_bf16 {d}, {v(ZF+4*f,4)}, {v(OUT[jj]+4*f,4)}, {d if t else 0}")
    sc = []
    for jj in range(2):
        t = TT[jj]; dp, dm = DN[jj]
        b = [f"v_rcp_f32 {v(t)}, {v(dp+4)}", f"v_rcp_f32 {v(t+1)}, {v(dm+4)}",
             f"v_mov_b32 {v(t+2)}, 0x358637bd",
             f"v_fma_f32 {v(t+2)}, {v(dp)}, {v(t)}, {v(t+2)}", f"v_fma_f32 {v(t+2)}, {v(dm)}, {v(t+1)}, {v(t+2)}",
             f"v_rcp_f32 {v(t+2)}, {v(t+2)}", f"v_mul_f32 {v(t)}, {v(t)}, {v(t+2)}", f"v_mul_f32 {v(t+1)}, {v(t+1)}, {v(t+2)}"]
        for i in range(16):
            b += [f"v_mul_f32 {v(PP[jj]+i)}, {v(PP[jj]+i)}, {v(t)}", f"v_mul_f32 {v(EE[jj]+i)}, {v(EE[jj]+i)}, {v(t+1)}"]
        sc.append(b + cvts(PP[jj], EE[jj], OUT[jj]))
    for ins in interleave(*sc): A(ins)
    stamp2(A, opt, 7)
    depart(A, 'G2', Z, 5, 14, 16, D_K2, NN, SWS, 62, LAST, opt.get('gsleep', 1))
    stamp2(A, opt, 8)
    A(f"s_lshl_b32 {s(T)}, {s(HEAD)}, 12\ns_add_u32 {s(T)}, {s(T)}, {WS_P2}")
    KF = 128; NO = (64, 80)
    for f in range(4):
        A(f"buffer_load_dwordx4 {v(KF+4*f,4)}, v30, {s(SWS,4)}, {s(T)} offen offset:{f*1024} sc1")
    A(f"s_mov_b64 exec, 1\nds_add_u32 {v(Z)}, v5 offset:{C_Y}\ns_mov_b64 exec, -1")
    A(f"""s_lshl_b32 {s(T)}, {s(RB)}, 1
    s_and_b32 {s(T+1)}, {s(WV)}, 1
    s_add_u32 {s(T+2)}, {s(T)}, {s(T+1)}
    s_lshl_b32 {s(T)}, {s(T+2)}, 17
    s_lshl_b32 {s(T+1)}, {s(HEAD)}, 11
    s_add_u32 {s(T)}, {s(T)}, {s(T+1)}
    s_add_u32 s60, {s(T)}, {WS_O}
    s_add_u32 s61, s60, 65536
    s_lshl_b32 {s(T)}, {s(RB)}, {FP}
    s_lshl_b32 {s(T+1)}, {s(HP)}, 3
    s_add_u32 {s(T)}, {s(T)}, {s(T+1)}
    s_add_u32 s63, {s(T)}, {WS_OF}
    v_and_b32 v15, 15, v1
    v_lshlrev_b32 v15, 4, v15
    v_bfe_u32 v16, v1, 4, 1
    v_lshl_add_u32 v15, v16, 10, v15
    v_lshrrev_b32 v16, 5, v1
    v_lshl_add_u32 v15, v16, 8, v15""")
    for f in range(4):
        A(f"s_waitcnt vmcnt({3-f})")
        for jj in range(2):
            A(f"v_mfma_f32_32x32x16_bf16 {v(NO[jj],16)}, {v(KF+4*f,4)}, {v(OUT[jj]+4*f,4)}, {v(NO[jj],16) if f else 0}")
    for jj in range(2):
        for t in range(2):
            for i in range(4):
                A(f"v_cvt_pk_bf16_f32 {v(96+8*jj+4*t+i)}, {v(NO[jj]+8*t+2*i)}, {v(NO[jj]+8*t+2*i+1)}")
            A(f"buffer_store_dwordx4 {v(96+8*jj+4*t,4)}, v15, {s(SWS,4)}, {s(60+jj)} offen offset:{t*512} sc1")
    A(f"""v_lshrrev_b32 v16, 5, v1
    v_bfe_u32 v17, v1, 4, 1
    v_bfe_u32 v33, v1, 2, 2
    v_lshl_add_u32 v17, v17, 2, v33
    v_lshrrev_b32 v33, 1, v17
    v_lshl_add_u32 v17, v16, 4, v17
    v_lshlrev_b32 v17, 7, v17
    v_lshl_add_u32 v17, v33, 5, v17
    v_and_b32 v33, 3, v1
    v_lshl_add_u32 v17, v33, 3, v17
    v_xor_b32 v35, 32, v17
    v_xor_b32 v36, 64, v17
    v_xor_b32 v37, 96, v17
    v_mov_b32 v34, v17""")
    for i in range(4): A(f"v_add_u32 {v(38+i)}, {P0}, {v(34+i)}")
    OA = 64; OFR = 96; WF = 160
    A(f"""s_lshl_b32 {s(T)}, {s(RBO)}, {FP}
    s_add_u32 s62, {s(T)}, {WS_OF}
    s_lshl_b32 {s(T)}, {s(RBO)}, 2
    s_add_u32 {s(T)}, {s(T)}, {s(WV)}
    s_lshl_b32 s67, {s(T)}, 16
    s_add_u32 s67, s67, {WS_O}
    s_mov_b32 s68, 0""")
    for i in range(32): A(f"v_mov_b32 {v(OA+i)}, 0")
    A("s_waitcnt vmcnt(0)")
    arrive(A, 'G3', Z, 5, 16, C_O, NN, SWS, 63, LAST, 8)
    A(f"s_mov_b64 exec, 1\nds_add_u32 {v(Z)}, v5 offset:{C_WO}\ns_mov_b64 exec, -1")
    stamp2(A, opt, 9)
    lds_wait(A, 'GW', Z, C_WO, 8, 16)
    def rdw(base, off, buf):
        return [f"ds_read_b64_tr_b16 {v(WF+16*buf+4*nn+2*j,2)}, {v(base+nn)} offset:{off + j*1024}" for nn in range(4) for j in range(2)]
    def ldo(slot):
        return [[f"s_xor_b32 {s(T)}, s68, {s(PHS)}", f"s_lshl_b32 {s(T)}, {s(T)}, 11", f"s_add_u32 {s(T)}, {s(T)}, s67", "s_add_u32 s68, s68, 1",
                 f"buffer_load_dwordx4 {v(OFR+8*slot,4)}, v30, {s(SWS,4)}, {s(T)} offen sc1"],
                [f"buffer_load_dwordx4 {v(OFR+8*slot+4,4)}, v30, {s(SWS,4)}, {s(T)} offen offset:1024 sc1"]]
    for ins in rdw(38, 0, 0): A(ins)
    depart(A, 'G3', Z, 5, 14, 16, D_O, NN, SWS, 62, LAST, opt.get('gsleep', 1), 8)
    stamp2(A, opt, 10)
    for sl in range(7):
        for g in ldo(sl):
            for ins in g: A(ins)
    A("s_mov_b32 s69, 0")
    def step(i, rd, ld, vm, extra=None):
        A(f"s_waitcnt vmcnt({vm}) lgkmcnt(0)")
        k = 0
        for nn in range(4):
            for a_ in ((0, 1) if nn % 2 == 0 else (1, 0)):
                c = v(OA + (nn*2+a_)*4, 4)
                A(f"v_mfma_f32_16x16x32_bf16 {c}, {v(WF+16*(i&1)+4*nn,4)}, {v(OFR+8*(i&7)+4*a_,4)}, {c}")
                for ins in rd[2*k:2*k+2]: A(ins)
                if 4 <= k < 4 + len(ld):
                    for ins in ld[k-4]: A(ins)
                if k == 6 and extra:
                    for ins in extra: A(ins)
                k += 1
    A.label('G_out')
    for i in range(8):
        ex = None
        if i == 4: ex = ["s_mov_b64 exec, 1", f"ds_add_u32 {v(Z)}, v5 offset:{C_PASS}", "s_mov_b64 exec, -1"]
        if i == 7:
            ex = [f"v_add_u32 {v(38+q)}, 32768, {v(38+q)}" for q in range(4)] + ["s_add_u32 s69, s69, 1", "s_cmp_lt_u32 s69, 3"]
        step(i, rdw(38, (i+1)*4096, (i+1) & 1), ldo((i+7) & 7), 12, ex)
    A("s_cbranch_scc1 G_out")
    lds_wait(A, 'GT', Z, C_TAIL, 4, 16)
    for ins in rdw(34, 0, 0): A(ins)
    for i in range(8):
        step(i, rdw(34, (i+1)*VBO, (i+1) & 1) if i < 7 else [], ldo(7) if i == 0 else [], 12 if i == 0 else 2*(7-i))
    stamp2(A, opt, 11)
    srd(A, 76, 50, 8388608)
    A(f"""v_and_b32 v8, 15, v1
    v_lshrrev_b32 v9, 5, v1
    v_and_b32 v10, 7, v1
    v_xor_b32 v10, v9, v10
    v_lshlrev_b32 v10, 4, v10
    v_bfe_u32 v9, v1, 4, 1
    v_lshl_add_u32 v10, v9, 3, v10
    v_lshl_add_u32 v10, v8, 7, v10
    s_lshl_b32 {s(T)}, {s(WV)}, 12
    s_add_u32 {s(T)}, {s(T)}, {P0}
    v_add_u32 v10, {s(T)}, v10
    v_lshrrev_b32 v8, 3, v1
    v_and_b32 v9, 7, v1
    v_xor_b32 v11, v8, v9
    v_lshlrev_b32 v11, 4, v11
    v_lshl_add_u32 v11, v8, 7, v11
    v_add_u32 v11, {s(T)}, v11
    v_lshlrev_b32 v9, 4, v9
    v_lshl_add_u32 v12, v8, 12, v9
    s_lshl_b32 {s(T)}, {s(RBO)}, 2
    s_add_u32 {s(T)}, {s(T)}, {s(WV)}
    s_lshl_b32 {s(T)}, {s(T)}, 17
    s_lshl_b32 {s(T+1)}, {s(NB)}, 7
    s_add_u32 {s(T)}, {s(T)}, {s(T+1)}""")
    lds_wait(A, 'GS', Z, C_PASS, 12, 16)
    for nn in range(4):
        A(f"v_xor_b32 v13, {32*nn}, v10")
        for a_ in range(2):
            c = OA + (nn*2+a_)*4; d = 96 + (nn*2+a_)*2
            A(f"""v_cvt_pk_bf16_f32 {v(d)}, {v(c)}, {v(c+1)}
            v_cvt_pk_bf16_f32 {v(d+1)}, {v(c+2)}, {v(c+3)}
            ds_write_b64 v13, {v(d,2)} offset:{a_*2048}""")
    for i in range(4): A(f"ds_read_b128 {v(128+4*i,4)}, v11 offset:{i*1024}")
    for i in range(4):
        A(f"s_waitcnt lgkmcnt({3-i})\nbuffer_store_dwordx4 {v(128+4*i,4)}, v12, s[76:79], {s(T)} offen{opt.get('ofl','')}")
        if i < 3: A(f"s_add_u32 {s(T)}, {s(T)}, 32768")
    stamp2_end(A, opt, SWS, 0)
    A("s_endpgm")

NAME = 'concat_heads__linear_kernel_hedgehog__ssm_conv_s4d__prompt'
def generate(opt):
    opt = dict(dict(m16=1, order='aconst', xor=3, rot=5, gprio2=2), **opt)
    hdr = open('cdna_kernels/' + NAME + '.s.ref').read().split('\n')
    hdr = [l for l in hdr if l.startswith(';') and '@launch' not in l and 'Override' not in l and 'grid=ceil' not in l]
    out = '\n'.join(hdr) + '\n'
    kn = NAME + '_kernel'
    if opt.get('list'): out += f"; @launch kernel={kn} grid=(256,1,1) block=(512,1,1) lds=163840\n"
    else: out += "; @launch grid=(256,1,1) block=(512,1,1) lds=163840\n"
    out += f'.amdgcn_target "amdgcn-amd-amdhsa--gfx950"\n.text\n.globl {kn}\n.p2align 8\n.type {kn},@function\n'
    A = Asm(); A.label(kn); A.label('K_start')
    A("""s_cmp_ge_u32 s2, 256
    s_cbranch_scc1 K_end
    s_load_dwordx4 s[4:7], s[0:1], 0
    s_load_dwordx2 s[36:37], s[0:1], 16
    s_load_dwordx2 s[50:51], s[0:1], 88
    s_load_dwordx4 s[52:55], s[0:1], 96
    s_load_dwordx16 s[80:95], s[0:1], 24""")
    if opt.get('stamps'):
        A("v_mov_b32 v35, 0\nv_mov_b32 v27, 0\ns_memrealtime s[96:97]\ns_waitcnt lgkmcnt(0)\nv_writelane_b32 v35, s96, 0\nv_writelane_b32 v27, s96, 0")
    ids(A, opt)
    A("s_cmp_eq_u32 s31, 0\ns_cbranch_scc1 G_entry")
    role_s(A, dict(opt, _sv=35))
    role_g(A, dict(opt, _sv=27))
    A.label('K_end'); A("s_endpgm")
    L, n = fix_hazards(A.L)
    p = check_waits(L)
    if p:
        print('WAIT PROBLEMS', p[:20])
    out += '\n'.join(('' if l.endswith(':') else '    ') + l for l in L) + '\n'
    out += f""".section .rodata,"a"
.p2align 6
.amdhsa_kernel {kn}
  .amdhsa_next_free_vgpr 256
  .amdhsa_next_free_sgpr 102
  .amdhsa_accum_offset 256
  .amdhsa_group_segment_fixed_size 0
  .amdhsa_kernarg_size 112
  .amdhsa_user_sgpr_count 2
  .amdhsa_user_sgpr_kernarg_segment_ptr 1
  .amdhsa_system_sgpr_workgroup_id_x 1
.end_amdhsa_kernel
"""
    print('nops', n, 'instrs', len(L))
    return out
if __name__ == '__main__':
    opt = json.loads(sys.argv[2]) if len(sys.argv) > 2 else {}
    open(sys.argv[1], 'w').write(generate(opt))
```

```python
from asmlib import *
from common import *
SLOT = 40960
XO, WO = 0, 16384

def ids(A, opt):
    arr = opt.get('arr', 8)
    lr = {16: 4, 8: 3, 4: 2, 2: 1}[arr]
    xr = 4 - lr
    A(f"""v_lshrrev_b32 v2, 6, v0
    v_and_b32 v1, 63, v0
    v_readfirstlane_b32 s28, v2
    s_and_b32 s24, s2, 7
    s_lshr_b32 s25, s2, 3
    s_and_b32 s26, s24, {(1<<xr)-1}
    s_lshl_b32 s26, s26, {lr}
    s_and_b32 s29, s25, {arr-1}
    s_add_u32 s26, s26, s29
    s_lshr_b32 s27, s24, {xr}
    s_lshl_b32 s27, s27, {5-lr}
    s_lshr_b32 s30, s25, {lr}
    s_add_u32 s27, s27, s30
    s_lshr_b32 s31, s28, 2
    s_and_b32 s28, s28, 3""")

class Loader:
    def __init__(s_, va=2, sx=8, sw=12, sc=16):
        s_.va, s_.sx, s_.sw = va, sx, sw
        s_.kx, s_.kw, s_.kw2, s_.ms, s_.mx, s_.mw, s_.ck = sc, sc+1, sc+2, sc+3, sc+4, sc+5, sc+6
    def setup(L, A, opt, t0):
        t1, t2 = t0+1, t0+2; T = 32
        va = L.va
        A(f"""v_lshrrev_b32 {v(t0)}, 3, v1
        v_and_b32 {v(t1)}, 7, v1
        v_lshrrev_b32 {v(t2)}, 4, v1
        v_xor_b32 {v(t2)}, {v(t1)}, {v(t2)}
        v_lshlrev_b32 {v(t2)}, 4, {v(t2)}
        v_lshl_add_u32 {v(t2)}, {v(t0)}, 11, {v(t2)}
        s_lshl_b32 {s(T)}, s26, 2
        s_add_u32 {s(T)}, {s(T)}, s28
        s_lshl_b32 {s(T)}, {s(T)}, 16
        v_add_u32 {v(va)}, {s(T)}, {v(t2)}
        v_xor_b32 {v(t2)}, 64, {v(va)}
        v_add_u32 {v(va+1)}, {16384-1024}, {v(t2)}
        v_add_u32 {v(va+2)}, {2*(16384-1024)}, {v(va)}
        v_add_u32 {v(va+3)}, {3*(16384-1024)}, {v(t2)}
        s_lshl_b32 {s(L.mx)}, s28, 12
        v_lshlrev_b32 {v(t2)}, 1, {v(t0)}
        v_and_b32 {v(t2)}, 4, {v(t2)}
        v_xor_b32 {v(t2)}, {v(t1)}, {v(t2)}
        s_and_b32 {s(T)}, s28, {1 if opt.get('m16') else 0}
        s_lshl_b32 {s(T)}, {s(T)}, 1
        v_xor_b32 {v(t2)}, {s(T)}, {v(t2)}
        v_lshlrev_b32 {v(t2)}, 4, {v(t2)}
        v_mul_u32_u24 {v(t0)}, 6144, {v(t0)}
        v_add_u32 {v(t2)}, {v(t0)}, {v(t2)}
        s_mul_i32 {s(T)}, s28, {8*6144}
        s_lshl_b32 {s(T+1)}, s27, 7
        s_add_u32 {s(T)}, {s(T)}, {s(T+1)}
        v_add_u32 {v(va+4)}, {s(T)}, {v(t2)}
        v_add_u32 {v(va+5)}, 1024, {v(va+4)}
        v_add_u32 {v(va+6)}, 2048, {v(va+4)}
        s_mul_i32 {s(L.mw)}, s28, 3072
        s_add_u32 {s(L.mw)}, {s(L.mw)}, {WO}
        s_mov_b32 {s(L.ms)}, 0""")
        A(f"s_bfe_u32 {s(T)}, s29, {0x10000 + opt.get('hsb', 2)}" if opt.get('hswap') else f"s_mov_b32 {s(T)}, 0")
        A(f"""s_mul_i32 s48, {s(T)}, {32*6144}
        s_sub_u32 s39, {32*6144}, s48
        s_mul_i32 {s(T)}, {s(T)}, 12288
        s_sub_u32 s38, {s(L.mw)}, {s(T)}
        s_add_u32 s38, s38, 12288
        s_add_u32 {s(L.mw)}, {s(L.mw)}, {s(T)}""")
        rot = opt.get('rot', 0)
        k = L.ck
        xm = opt.get('xor', 0)
        if opt.get('xphi') == 'y': A(f"s_and_b32 s23, s24, 3\ns_cmp_eq_u32 s23, 1\ns_cselect_b32 s23, 0, s30\ns_xor_b32 s23, s23, s29\ns_and_b32 s23, s23, {xm}")
        elif opt.get('xphi') == 'z': A(f"s_and_b32 s23, s29, {xm}")
        elif opt.get('xphi') == 'x': A(f"s_xor_b32 s23, s30, s29\ns_and_b32 s23, s23, {xm}")
        elif xm == 7: A("s_lshl_b32 s23, s30, 1\ns_add_u32 s23, s23, s29\ns_and_b32 s23, s23, 7")
        else: A(f"s_add_u32 s23, s30, s29\ns_and_b32 s23, s23, {xm}")
        if rot == 0: A(f"s_mov_b32 {s(k)}, 0")
        elif rot == 1: A(f"s_lshl_b32 {s(k)}, s30, 1\ns_add_u32 {s(k)}, {s(k)}, s29\ns_lshl_b32 {s(k)}, {s(k)}, 1\ns_and_b32 {s(k)}, {s(k)}, 15")
        elif rot == 3: A(f"s_lshl_b32 {s(k)}, s24, 1")
        elif rot == 7: A(f"s_and_b32 {s(k)}, s24, 3\ns_lshl_b32 {s(k)}, {s(k)}, 2")
        elif rot == 4: A(f"s_add_u32 {s(k)}, s30, s29\ns_and_b32 {s(k)}, {s(k)}, 3\ns_lshl_b32 {s(k)}, {s(k)}, 2")
        elif rot == 5: A(f"s_lshr_b32 {s(k)}, s24, 1\ns_and_b32 {s(T)}, s24, 1\ns_lshl_b32 {s(T)}, {s(T)}, 1\ns_add_u32 {s(k)}, {s(k)}, {s(T)}\ns_and_b32 {s(k)}, {s(k)}, 3\ns_lshl_b32 {s(k)}, {s(k)}, 2")
        elif rot == 6: A(f"s_add_u32 {s(k)}, s30, s29\ns_and_b32 {s(k)}, {s(k)}, 1\ns_lshl_b32 {s(k)}, {s(k)}, 3")
        A('s_waitcnt lgkmcnt(0)')
        srd(A, L.sx, 4, 4194304); srd(A, L.sw, 6, 6291456)
    def chunk(L, opt):
        fx = opt.get('xfl', ''); fw = opt.get('wfl2', '')
        g = [[f"s_xor_b32 {s(L.kw)}, {s(L.ck)}, s23", f"s_lshl_b32 {s(L.kx)}, {s(L.kw)}, 7", f"s_mul_i32 {s(L.kw)}, {s(L.kw)}, {64*6144}",
              f"s_add_u32 m0, {s(L.ms)}, {s(L.mw)}", f"s_add_u32 {s(L.kw2)}, {s(L.kw)}, s39", f"s_add_u32 {s(L.kw)}, {s(L.kw)}, s48"]]
        for p in range(3):
            g[-1].append(f"buffer_load_dwordx4 {v(L.va+4+p)}, {s(L.sw,4)}, {s(L.kw)} offen offset:{p*1024}{fw} lds"); g.append([])
        g[-1] += [f"s_add_u32 m0, {s(L.ms)}, {s(L.mx)}", f"s_add_u32 {s(L.ck)}, {s(L.ck)}, 1"]
        for i in range(4):
            g[-1].append(f"buffer_load_dwordx4 {v(L.va+i)}, {s(L.sx,4)}, {s(L.kx)} offen offset:{i*1024}{fx} lds"); g.append([])
        g[-1] += [f"s_add_u32 m0, {s(L.ms)}, s38", f"s_and_b32 {s(L.ck)}, {s(L.ck)}, 15"]
        for p in range(3):
            g[-1].append(f"buffer_load_dwordx4 {v(L.va+4+p)}, {s(L.sw,4)}, {s(L.kw2)} offen offset:{p*1024}{fw} lds"); g.append([])
        g[-1] += [f"s_add_u32 {s(L.ms)}, {s(L.ms)}, {SLOT}", f"s_cmp_eq_u32 {s(L.ms)}, {3*SLOT}", f"s_cselect_b32 {s(L.ms)}, 0, {s(L.ms)}"]
        return g

def g_addr(A, vxr, vwr, t0):
    t1, t2 = t0+1, t0+2; T = 32
    A(f"""v_and_b32 {v(t0)}, 31, v1
    v_lshrrev_b32 {v(t1)}, 5, v1
    v_bfe_u32 {v(t2)}, v1, 1, 3
    v_xor_b32 {v(t2)}, {v(t1)}, {v(t2)}
    v_lshlrev_b32 {v(t2)}, 4, {v(t2)}
    v_lshl_add_u32 {v(t2)}, {v(t0)}, 7, {v(t2)}
    s_and_b32 {s(T)}, s28, 1
    s_lshl_b32 {s(T)}, {s(T)}, 13
    v_add_u32 {v(vxr)}, {s(T)}, {v(t2)}
    v_xor_b32 {v(vxr+1)}, 32, {v(vxr)}
    v_xor_b32 {v(vxr+2)}, 64, {v(vxr)}
    v_xor_b32 {v(vxr+3)}, 96, {v(vxr)}
    v_mul_u32_u24 {v(t1)}, 3072, {v(t1)}
    v_bfe_u32 {v(t0)}, v1, 2, 2
    v_lshl_add_u32 {v(t1)}, {v(t0)}, 7, {v(t1)}
    v_lshrrev_b32 {v(t0)}, 1, {v(t0)}
    s_lshr_b32 {s(T)}, s28, 1
    v_xor_b32 {v(t0)}, {s(T)}, {v(t0)}
    v_lshl_add_u32 {v(t1)}, {v(t0)}, 6, {v(t1)}
    v_bfe_u32 {v(t0)}, v1, 4, 1
    v_lshl_add_u32 {v(t1)}, {v(t0)}, 5, {v(t1)}
    v_and_b32 {v(t0)}, 3, v1
    v_lshl_add_u32 {v(vwr)}, {v(t0)}, 3, {v(t1)}""")

def g_loop(A, opt, acc, FB, vxr, vwr, at_loop=None):
    SD, SI, SS = 16, 17, 18
    def rd(ks, buf):
        b = FB + 20*buf
        w = [f"ds_read_b64_tr_b16 {v(b+8+p*4+2*j,2)}, {v(vwr)} offset:{WO + ks*6144 + p*1024 + j*512}" for p in range(3) for j in range(2)]
        x = [f"ds_read_b128 {v(b+4*j,4)}, {v(vxr+ks)} offset:{j*4096}" for j in range(2)]
        return [w[0], w[1], x[0], x[1]] + w[2:]
    def mf(buf):
        b = FB + 20*buf; o = []
        for p in range(3):
            for j in range(2):
                c = v(acc + (p*2+j)*16, 16); x = v(b+4*j, 4); w = v(b+8+p*4, 4)
                o.append(f"v_mfma_f32_32x32x16_bf16 {c}, {w}, {x}, {c}" if p < 2 else f"v_mfma_f32_32x32x16_bf16 {c}, {x}, {w}, {c}")
        return o
    A(f"s_mov_b32 {s(SI)}, 0\ns_mov_b32 {s(SS)}, 0\ns_mov_b32 s19, {SLOT}")
    A("s_barrier")
    for ins in rd(0, 0): A(ins)
    if at_loop: at_loop(A)
    A.label('G_loop')
    pat = opt.get('rpat', (3, 3, 2, 0, 0, 0))
    for ks in range(4):
        extra = [[] for _ in range(6)]
        if ks == 0:
            extra[3] = [f"s_add_u32 {s(SS)}, {s(SS)}, 1", f"s_cmp_eq_u32 {s(SS)}, 3", f"s_cselect_b32 {s(SD)}, {(-2*SLOT) & 0xffffffff}, s19", f"s_cselect_b32 {s(SS)}, 0, {s(SS)}"]
            extra[4] = [f"v_add_u32 {v(vxr)}, {s(SD)}, {v(vxr)}", f"v_add_u32 {v(vxr+1)}, {s(SD)}, {v(vxr+1)}"]
        if ks == 1: extra[4] = [f"v_add_u32 {v(vxr+2)}, {s(SD)}, {v(vxr+2)}"]
        if ks == 2: extra[4] = [f"v_add_u32 {v(vxr+3)}, {s(SD)}, {v(vxr+3)}", f"v_add_u32 {v(vwr)}, {s(SD)}, {v(vwr)}"]
        if ks == 3: extra[4] = [f"s_add_u32 {s(SI)}, {s(SI)}, 1", f"s_cmp_lt_u32 {s(SI)}, 16"]
        A("s_waitcnt lgkmcnt(0)")
        if ks == 3: A("s_barrier")
        r = rd((ks+1) & 3, (ks+1) & 1); ri = 0
        for i, m in enumerate(mf(ks & 1)):
            A(m)
            for ins in r[ri:ri+pat[i]]: A(ins)
            ri += pat[i]
            for ins in extra[i]: A(ins)
    A("s_cbranch_scc1 G_loop")
    A("s_waitcnt lgkmcnt(0)")

def g_addr16(A, vxr, vwr, t0):
    t1, t2 = t0+1, t0+2; T = 32
    A(f"""v_and_b32 {v(t0)}, 15, v1
    v_lshrrev_b32 {v(t1)}, 4, v1
    v_bfe_u32 {v(t2)}, v1, 1, 3
    v_xor_b32 {v(t2)}, {v(t1)}, {v(t2)}
    v_lshlrev_b32 {v(t2)}, 4, {v(t2)}
    v_lshl_add_u32 {v(t2)}, {v(t0)}, 7, {v(t2)}
    s_and_b32 {s(T)}, s28, 1
    s_lshl_b32 {s(T)}, {s(T)}, 13
    v_add_u32 {v(vxr)}, {s(T)}, {v(t2)}
    v_xor_b32 {v(vxr+1)}, 64, {v(vxr)}
    v_and_b32 {v(t2)}, 1, {v(t1)}
    v_mul_u32_u24 {v(t1)}, 3072, {v(t1)}
    v_lshl_add_u32 {v(t1)}, {v(t2)}, 5, {v(t1)}
    v_bfe_u32 {v(t0)}, v1, 2, 2
    v_lshl_add_u32 {v(t1)}, {v(t0)}, 7, {v(t1)}
    v_lshrrev_b32 {v(t0)}, 1, {v(t0)}
    s_lshr_b32 {s(T)}, s28, 1
    v_xor_b32 {v(t0)}, {s(T)}, {v(t0)}
    v_lshl_add_u32 {v(t1)}, {v(t0)}, 6, {v(t1)}
    v_and_b32 {v(t0)}, 3, v1
    v_lshl_add_u32 {v(vwr)}, {v(t0)}, 3, {v(t1)}
    v_xor_b32 {v(vwr+1)}, 32, {v(vwr)}""")

def g_loop16(A, opt, acc, FB, vxr, vwr, at_loop=None):
    SD, SI, SS = 16, 17, 18
    def rd(ks, buf):
        b = FB + 40*buf
        w = [f"ds_read_b64_tr_b16 {v(b+16+(p*2+nn)*4+2*j,2)}, {v(vwr+nn)} offset:{WO + ks*12288 + p*1024 + j*512}" for p in range(3) for nn in range(2) for j in range(2)]
        x = [f"ds_read_b128 {v(b+4*j,4)}, {v(vxr+ks)} offset:{j*2048}" for j in range(4)]
        return w[:2] + x + w[2:]
    def mf(buf):
        b = FB + 40*buf; o = []
        od = opt.get('order', 'w')
        if od == 'w': seq = [(q, j) for q in range(6) for j in range(4)]
        elif od == 'wsnake': seq = [(q, j if q % 2 == 0 else 3-j) for q in range(6) for j in range(4)]
        elif od == 'x': seq = [(q, j) for j in range(4) for q in range(6)]
        elif od == 'xsnake': seq = [(q if j % 2 == 0 else 5-q, j) for j in range(4) for q in range(6)]
        elif od == 'aconst': seq = [(q, j if q % 2 == 0 else 3-j) for q in range(4) for j in range(4)] + [(4 + (q if j % 2 == 0 else 1-q), j) for j in range(4) for q in range(2)]
        elif od == 'bconst': seq = [(q if j % 2 == 0 else 3-q, j) for j in range(4) for q in range(4)] + [(q, j if q % 2 == 0 else 3-j) for q in (4, 5) for j in range(4)]
        elif od == 'diag': seq = [((i + i//6*0) % 6, i % 4) for i in range(12)] + [(i % 6, (i+1) % 4) for i in range(12)]
        assert len(set(seq)) == 24
        rg = a if opt.get('agpr') else v
        for q, j in seq:
            c = rg((0 if opt.get('agpr') else acc) + (q*4+j)*4, 4); x = v(b+4*j, 4); w = v(b+16+q*4, 4)
            o.append(f"v_mfma_f32_16x16x32_bf16 {c}, {w}, {x}, {c}" if q < 4 else f"v_mfma_f32_16x16x32_bf16 {c}, {x}, {w}, {c}")
        return o
    A(f"s_mov_b32 {s(SI)}, 0\ns_mov_b32 {s(SS)}, {opt.get('ss0', 0)}\ns_mov_b32 s19, {SLOT}")
    A("s_barrier")
    for n, ins in enumerate(rd(0, 0)):
        A(ins)
        if n == 12: A("s_waitcnt lgkmcnt(8)")
    if at_loop: at_loop(A)
    A.label('G_loop')
    for ks in range(2):
        extra = [[] for _ in range(24)]
        if ks == 0:
            extra[16] = [f"s_add_u32 {s(SS)}, {s(SS)}, 1", f"s_cmp_eq_u32 {s(SS)}, 3"]
            extra[17] = [f"s_cselect_b32 {s(SD)}, {(-2*SLOT) & 0xffffffff}, s19", f"s_cselect_b32 {s(SS)}, 0, {s(SS)}"]
            for q, r_ in enumerate((vxr, vxr+1, vwr, vwr+1)): extra[18+q] = [f"v_add_u32 {v(r_)}, {s(SD)}, {v(r_)}"]
            if opt.get('split'):
                sp = opt['split']
                extra[opt.get('frd', 16)] = [f"ds_read_b32 {v(sp['got'])}, {v(sp['ra'])} offset:{sp['off']}"] + extra[opt.get('frd', 16)]
            elif opt.get('nob16'): extra[22] = [f"s_cmp_eq_u32 {s(SI)}, 15"]
        else:
            extra[20] = [f"s_add_u32 {s(SI)}, {s(SI)}, 1", f"s_cmp_lt_u32 {s(SI)}, 16"]
            if opt.get('split'):
                sp = opt['split']
                extra[17] = [f"v_add_u32 {v(sp['need'])}, {v(sp['need'])}, {v(sp['inc'])}"]
                extra[18] = [f"v_add_u32 {v(sp['cnt'])}, 1, {v(sp['cnt'])}"]
        A("s_waitcnt vmcnt(0) lgkmcnt(0)" if ks == 1 and opt.get('gvm') else "s_waitcnt lgkmcnt(0)")
        if ks == 1 and opt.get('split'):
            sp = opt['split']
            A(f"v_cmp_gt_u32 vcc, {v(sp['need'])}, {v(sp['got'])}\nds_write_b32 {v(sp['wa'])}, {v(sp['cnt'])} offset:{sp['off']+16}\ns_cbranch_vccnz G_fslow\nG_fback:")
        elif ks == 1 and opt.get('peel'): A("s_cbranch_scc1 G_last\ns_barrier")
        elif ks == 1 and opt.get('nob16'): A("s_cbranch_scc1 G_nobar\ns_barrier\nG_nobar:")
        elif ks == 1: A("s_barrier")
        r = rd(1-ks, 1-ks)
        for i, m in enumerate(mf(ks)):
            A(m)
            if i < 16: A(r[i])
            if i == 13: A("s_waitcnt lgkmcnt(10)")
            for ins in extra[i]: A(ins)
    if opt.get('peel'):
        A("s_branch G_loop"); A.label('G_last'); return
    A("s_cbranch_scc1 G_loop")
    A("s_waitcnt lgkmcnt(0)")
```

```python
import sys, json
from asmlib import *
from common import *
from kgen import *
import loop2
from loop2 import ids, SLOT, XO, WO

TW = 8704
TT2 = 4352
WPH = 4*TW
MISC = WPH + 4096
ZA, ONES, FLG = MISC, MISC + 1024, MISC + 1280
F_PAIR = FLG
(C_WO, C_PASS, C_GO, C_K1, C_K2, C_O, C_Y, C_U, D_K1, D_K2, D_O, D_Y, D_U, C_TAIL, C_UA) = [FLG + 16 + 4*i for i in range(15)]
RING = 40960
P0, P1, P2 = RING, RING + SLOT, RING + 2*SLOT
UB = 163840 - 16384
PH = P1
VBA = P1 + 32768
FP = 10
WS_OF = WS_UF + 49152
WS_YF = WS_UF + 65536
WV, RB, HP, T = 28, 26, 27, 32
CG, CH, QI, TB = 66, 67, 68, 69
CB, M = HP, RB
RBO, NB, PHS = 70, 71, 72
SWS, SWO, SMI = 40, 44, 76

def merge(a_, b_):
    o = []; i = j = 0
    while i < len(a_) or j < len(b_):
        if j >= len(b_) or (i < len(a_) and i*len(b_) <= j*len(a_)): o.append(a_[i]); i += 1
        else: o.append(b_[j]); j += 1
    return o

def lds_wait(A, tag, vaddr, off, val, vt, sleep=1):
    A("s_mov_b32 s58, 0")
    A.label(f'{tag}_lw')
    A(f"""ds_read_b32 {v(vt)}, {v(vaddr)} offset:{off}
    s_add_u32 s58, s58, 1
    s_cmp_gt_u32 s58, {SPIN_MAX*4}
    s_cbranch_scc1 {tag}_lwok
    s_waitcnt lgkmcnt(0)
    v_cmp_gt_u32 vcc, {val}, {v(vt)}
    s_nop 0
    s_cbranch_vccz {tag}_lwok""")
    if sleep: A(f"s_sleep {sleep}")
    A(f"s_branch {tag}_lw")
    A.label(f'{tag}_lwok')
    A("s_waitcnt lgkmcnt(0)")

def lds_inc(vz, vone, off):
    return ["s_mov_b64 exec, 1", f"ds_add_u32 {v(vz)}, {v(vone)} offset:{off}", "s_mov_b64 exec, -1"]

def arrive(A, tag, vz, vone, vt, cnt, nn, sflag, slast, n=4):
    A(f"""s_mov_b64 exec, 1
    ds_add_rtn_u32 {v(vt)}, {v(vz)}, {v(vone)} offset:{cnt}
    s_waitcnt lgkmcnt(0)
    v_readfirstlane_b32 {s(slast)}, {v(vt)}
    s_cmp_eq_u32 {s(slast)}, {n-1}
    s_cbranch_scc0 {tag}_arr
    buffer_store_dwordx2 {v(nn,2)}, {v(vz)}, {s(SWS,4)}, {s(sflag)} offen sc1""")
    A.label(f'{tag}_arr')
    A("s_mov_b64 exec, -1")

def depart(A, tag, vz, vone, voff, vt, done, nn, sline, slast, lastval, sleep):
    A(f"s_cmp_eq_u32 {s(slast)}, {lastval}\ns_cbranch_scc0 {tag}_oth")
    poll(A, tag, voff, SWS, sline, nn, vt, 58, sleep=sleep)
    A(f"ds_write_b32 {v(vz)}, {v(vone)} offset:{done}\ns_branch {tag}_go")
    A.label(f'{tag}_oth')
    lds_wait(A, tag, vz, done, 1, vt)
    A.label(f'{tag}_go')

def out_ids(A, opt):
    ar = opt.get('oarr', 4); lr = {2: 1, 4: 2, 8: 3}[ar]; xr = 4 - lr
    A(f"""s_and_b32 {s(RBO)}, s24, {(1<<xr)-1}
    s_lshl_b32 {s(RBO)}, {s(RBO)}, {lr}
    s_and_b32 {s(PHS)}, s25, {ar-1}
    s_add_u32 {s(RBO)}, {s(RBO)}, {s(PHS)}
    s_lshr_b32 {s(NB)}, s24, {xr}
    s_lshl_b32 {s(NB)}, {s(NB)}, {5-lr}
    s_lshr_b32 {s(T)}, s25, {lr}
    s_add_u32 {s(NB)}, {s(NB)}, {s(T)}
    s_add_u32 {s(PHS)}, {s(PHS)}, {s(T)}
    s_and_b32 {s(PHS)}, {s(PHS)}, {opt.get('oxm', 3)}
    s_lshl_b32 {s(PHS)}, {s(PHS)}, {opt.get('oxs', 1)}""")

def stamp2(A, opt, i):
    if opt.get('stamps'):
        A(f"s_memrealtime s[96:97]\ns_waitcnt lgkmcnt(0)\nv_writelane_b32 {v(opt['_sv'])}, s96, {i}")
def stamp2_end(A, opt, role):
    if not opt.get('stamps'): return
    A("s_waitcnt vmcnt(0)")
    stamp2(A, opt, 15)
    A(f"""s_lshl_b32 s96, s2, 8
    s_lshl_b32 s97, {s(WV)}, 6
    s_add_u32 s96, s96, s97
    s_add_u32 s96, s96, {WS_ST + role*65536}
    v_lshlrev_b32 v2, 2, v1
    s_mov_b64 exec, 0xffff
    buffer_store_dword {v(opt['_sv'])}, v2, {s(SWS,4)}, s96 offen
    s_waitcnt vmcnt(0)""")

def dma_stream(L, opt):
    stream = []
    for c in range(16):
        gs = L.chunk(opt)
        gs[-1] = [f"s_add_u32 {s(L.ms)}, {s(L.ms)}, {SLOT}", f"s_cmp_eq_u32 {s(L.ms)}, {RING+3*SLOT}", f"s_cselect_b32 {s(L.ms)}, {RING}, {s(L.ms)}"]
        gs[-2] = gs[-2] + gs[-1]; gs = gs[:-1]
        xs = opt['xs']
        if xs[c//4] != opt['xor']:
            gs[0] = [f"s_and_b32 {s(L.kx)}, s23, {xs[c//4]}", gs[0][0].replace('s23', s(L.kx))] + gs[0][1:]
        stream += gs
    return stream
P = 232

def entry(A, opt):
    A("""s_cmp_ge_u32 s2, 256
    s_cbranch_scc1 K_end
    s_load_dwordx4 s[4:7], s[0:1], 0
    s_load_dwordx16 s[80:95], s[0:1], 24
    s_load_dwordx2 s[36:37], s[0:1], 16
    s_load_dwordx2 s[50:51], s[0:1], 88
    s_load_dwordx4 s[52:55], s[0:1], 96""")
    if opt.get('stamps'):
        A("v_mov_b32 v35, 0\nv_mov_b32 v27, 0\ns_memrealtime s[98:99]")
    ids(A, opt)
    A(f"""s_lshl_b32 {s(CG)}, {s(CB)}, 4
    s_add_u32 {s(CG)}, {s(CG)}, {s(M)}
    s_lshl_b32 {s(CH)}, {s(CG)}, 2
    s_add_u32 {s(CH)}, {s(CH)}, {s(WV)}
    s_lshl_b32 {s(T)}, {s(CH)}, 8
    v_lshl_add_u32 v10, v1, 2, {s(T)}
    s_lshr_b32 s64, {s(CH)}, 1
    s_lshl_b32 s64, s64, 2""")
    L = loop2.Loader()
    L.setup(A, opt, 14)
    A(f"s_mov_b32 {s(L.ms)}, {P1}")
    if opt.get('stamps'): A("v_writelane_b32 v35, s98, 0\nv_writelane_b32 v27, s98, 0")
    stream = dma_stream(L, opt)
    gn = opt['gn']
    nt = ' nt' if opt.get('nt') else ''
    A("s_cmp_eq_u32 s31, 0\ns_cbranch_scc1 G_first\ns_setprio 3")
    A.extend([f"global_load_dword {v(P+4+k)}, v10, {s(sp,2)}{nt}" for k, sp in enumerate((84, 86, 88, 90))])
    if opt.get('sbar'): A("s_barrier")
    A("s_load_dword s65, s[92:93], s64\ns_load_dword s75, s[94:95], s64")
    A("s_branch S_entry")
    A.label('G_first')
    if opt.get('gdelay'): A(f"s_nop {opt['gdelay']}")
    if opt.get('sbar'): A("s_barrier")
    for g in stream[:opt['g1']]: A.extend(g)
    A("s_branch G_entry")
    A.label('S_entry')
    return L, stream

def role_s(A, opt, L, stream):
    A(f"s_setprio {opt.get('sprio', 0)}")
    gn = opt['gn']
    order = []
    def emit(g, tag):
        for ins in g:
            A(ins)
            if ins.startswith('buffer_') or ins.startswith('global_'): order.append(tag)
    def wait(tag):
        if tag not in order: return
        last = len(order) - 1 - order[::-1].index(tag)
        A(f"s_waitcnt vmcnt({len(order) - 1 - last})")
    NN = 10; Z, ONE = 9, 5
    SL, SLL, SIT = 56, 57, 59
    DT, XA, YA = 34, 32, 33
    OUTV = (112, 170)
    nt = ' nt' if opt.get('nt') else ''
    order += ['par']*4
    for g in stream[:gn]:
        for ins in g:
            if not ins.startswith('buffer_'): A(ins)
    A(f"""s_lshl_b32 {s(QI)}, {s(M)}, 2
    s_add_u32 {s(QI)}, {s(QI)}, {s(WV)}
    s_mul_i32 {s(TB)}, {s(WV)}, {TW}
    v_lshrrev_b32 v12, 3, v1
    v_and_b32 v13, 7, v1
    v_lshlrev_b32 v13, 4, v13
    v_lshl_add_u32 v12, v12, 11, v13
    v_lshlrev_b32 v15, 4, v1
    v_mov_b32 {v(Z)}, 0
    v_and_b32 v14, 15, v1
    v_lshlrev_b32 v14, 3, v14
    s_mov_b32 {s(SL)}, {LOG2E}
    s_mov_b32 {s(SLL)}, 0x32a57060""")
    out_ids(A, opt)
    srd(A, SMI, 82, 4194304); srd(A, SWS, 54, WS_SIZE); srd(A, SWO, 80, 2097152)
    pk0, xrows, row0 = kvals(P, DT, OUTV[0], SL, SLL, True)
    early = opt.get('kearly', 1)
    A(f"""s_and_b32 {s(T)}, {s(WV)}, 1
    s_lshl_b32 {s(T)}, {s(T)}, 4
    s_waitcnt lgkmcnt(0)
    s_lshr_b32 s65, s65, {s(T)}
    s_lshr_b32 s75, s75, {s(T)}
    s_lshl_b32 s65, s65, 16
    s_lshl_b32 s75, s75, 16
    v_mov_b32 {v(P+8)}, s65
    v_mov_b32 {v(P+9)}, s75""")
    A.extend(exp_bf16(DT, P+8, 36, 37, SL, SLL))
    wait('par')
    stamp2(A, opt, 14)
    for k in range(4): A(f"v_lshlrev_b32 {v(P+k)}, 16, {v(P+4+k)}\nv_and_b32 {v(P+4+k)}, 0xffff0000, {v(P+4+k)}")
    kp = []
    for ps in range(2):
        ins, _, _ = kvals(P+4*ps, DT, OUTV[ps], SL, SLL, ps < early)
        if ps < early: A.extend(ins)
        else: kp += ins
    jobs = {}
    def job(iv, pos, fn): jobs.setdefault((iv, pos), []).append(fn)
    def j_uload():
        ug = [f"s_lshl_b32 {s(T)}, {s(QI)}, 16", f"s_lshl_b32 {s(T+1)}, {s(CB)}, 7", f"s_add_u32 {s(T)}, {s(T)}, {s(T+1)}", f"s_mov_b32 m0, {s(TB)}"]
        for i in range(4):
            ug.append(f"buffer_load_dwordx4 v12, {s(SMI,4)}, {s(T)} offen offset:{i*1024}{nt} lds")
            if i < 3: ug.append(f"s_add_u32 {s(T)}, {s(T)}, {16384-1024}")
        emit(ug + [f"global_load_dwordx2 {v(NN,2)}, {v(Z)}, s[52:53] sc1"], 'u')
    def j_utr():
        A(f"""v_bfe_u32 v16, v1, 2, 2
        v_lshrrev_b32 v17, 4, v1
        v_lshl_add_u32 v12, v16, 2, v17
        v_and_b32 v18, 3, v1
        v_lshlrev_b32 v19, 3, v18
        v_lshl_add_u32 v12, v12, 7, v19
        v_add_u32 v12, {s(TB)}, v12
        v_lshlrev_b32 v13, 14, v16
        v_lshl_add_u32 v13, v17, 6, v13
        v_xor_b32 v18, {s(WV)}, v18
        v_lshl_add_u32 v13, v18, 4, v13
        s_lshl_b32 s74, {s(CB)}, 18
        s_lshl_b32 {s(T+1)}, {s(QI)}, 8
        s_add_u32 s74, s74, {s(T+1)}
        s_add_u32 s74, s74, {WS_UT}""")
        wait('u')
        for z in range(4):
            for j in range(2):
                A(f"ds_read_b64_tr_b16 {v(16+4*z+2*j,2)}, v12 offset:{j*2048 + z*32}")
    def j_ust(z):
        def f():
            if z == 0: A("s_waitcnt lgkmcnt(0)")
            emit([f"buffer_store_dwordx4 {v(16+4*z,4)}, v13, {s(SWS,4)}, s74 offen sc1"], 'ut')
            A("s_add_u32 s74, s74, 65536")
        return f
    u0 = opt['u0']
    if u0 < 16: job(u0, 0, j_uload)
    q0 = opt.get('q0', 30); qn = opt.get('q1', 170) - q0
    leads = opt['leads'] + [10]*(17-len(opt['leads']))
    pos = gn; kpos = 0
    for c in range(15):
        tgt = min(160, 10*(c+1) + leads[c])
        while pos < tgt:
            for fn in jobs.pop((pos//10, pos % 10), []):
                assert pos % 10 in (0, 3, 7); fn()
            emit(stream[pos], f'c{pos//10}'); pos += 1
            if pos == 160 and u0 == 16: j_uload()
            if pos > q0:
                e = min(len(kp), len(kp)*(pos - q0)//qn)
                A.extend(kp[kpos:e]); kpos = e
        wait(f'c{c}'); A("s_barrier")
        if c in (0, 3, 6, 9, 12): stamp2(A, opt, {0: 1, 3: 8, 6: 9, 9: 10, 12: 11}[c])
    assert not jobs
    if u0 == 17: j_uload()
    stamp2(A, opt, 2)
    A.extend(kp[kpos:])
    ar = opt.get('oarr', 4); npf = 4 // ar if ar <= 4 else 1
    A(f"""v_lshrrev_b32 v36, 3, v1
    v_and_b32 v37, 7, v1
    v_and_b32 v8, 6, v36
    v_xor_b32 v37, v37, v8
    v_lshlrev_b32 v37, 4, v37
    v_lshl_add_u32 v37, v36, 11, v37
    s_lshl_b32 {s(T)}, {s(NB)}, 7
    v_add_u32 v8, {s(T)}, v37
    s_lshl_b32 s75, {s(PHS)}, 2
    s_mul_i32 s64, {s(WV)}, 10
    s_lshl_b32 s65, {s(WV)}, 1
    v_and_b32 v36, 31, v1
    v_lshrrev_b32 v37, 5, v1
    v_mul_u32_u24 v38, {TP}, v36
    v_lshl_add_u32 v38, v37, 4, v38
    v_add_u32 {v(YA)}, {s(TB)}, v38
    v_cmp_gt_u32 s[62:63], v36, 27
    v_subrev_u32 v39, {2*TP}, {v(YA)}
    v_mov_b32 v42, 0x3f80
    v_cndmask_b32 {v(XA)}, {v(YA)}, v39, s[62:63]
    v_mov_b32 v40, 0
    v_mov_b32 v41, 0
    s_lshl_b32 {s(T)}, {s(WV)}, 9
    s_add_u32 {s(T)}, {s(T)}, {UB-2048}
    v_lshl_add_u32 v36, v1, 3, {s(T)}
    v_mov_b32 v43, {v(P+9)}
    v_mov_b32 {v(ONE)}, 1
    v_lshlrev_b32 v2, 11, v1
    s_lshl_b32 s63, {s(CB)}, {FP}
    s_add_u32 s63, s63, {WS_UF}
    s_lshl_b32 {s(T+1)}, {s(M)}, 3
    s_add_u32 s62, s63, {s(T+1)}
    s_and_b32 {s(T)}, {s(RBO)}, {min(ar,4)-1}
    s_lshl_b32 {s(T)}, {s(T)}, 2
    s_add_u32 {s(T)}, {s(T)}, {s(WV)}
    s_mul_i32 {s(T)}, {s(T)}, {npf << 17}
    s_lshl_b32 {s(T+1)}, {s(NB)}, 7
    s_add_u32 s61, {s(T)}, {s(T+1)}
    s_mov_b32 m0, {s(TB)}""")
    wait('c15'); A("s_barrier")
    j_utr()
    for z in range(4): j_ust(z)()
    def piece(sb, k):
        return [f"s_add_u32 {s(T)}, {s(sb)}, {k}", f"s_lshl_b32 {s(T+1)}, {s(T)}, 10", f"s_add_u32 m0, {s(T+1)}, {P0}",
                f"s_xor_b32 {s(T)}, {s(T)}, s75", f"s_lshl_b32 {s(T)}, {s(T)}, 14", f"buffer_load_dwordx4 v8, {s(SWO,4)}, {s(T)} offen lds"]
    b1 = [piece(64, k) for k in range(10)] + [piece(65, 88+k) for k in range(2)] if opt['b1'] == 's' else []
    pf = []
    for q in range(npf):
        pf.append(f"buffer_load_dword {v(6+q)}, v2, {s(SWO,4)}, s61 offen")
        if q + 1 < npf: pf.append(f"s_add_u32 s61, s61, {1 << 17}")
    nb1 = opt.get('nb1', 2) if b1 else 0
    if not b1 or opt.get('pffirst'): emit(pf, 'pf'); pf = []
    for g in b1[:nb1]: emit(g, 'b1')
    A(f"s_mov_b32 m0, {s(TB)}")
    A("ds_write_b64 v36, v[40:41]")
    KA = 16
    x0, y0, m0_ = klds(OUTV[0], xrows, row0, 42, XA, YA, 44, 76, KA, True)
    x1, y1, m1_ = klds(OUTV[1], xrows, row0, 42, XA, YA, 112, 144, KA, False)
    seq = x0 + y0 + x1 + y1
    nb16 = opt.get('nb16', 60)
    A.extend(seq[:nb16])
    A("s_barrier")
    if opt.get('sprio'): A("s_setprio 0")
    stamp2(A, opt, 3)
    nua = opt.get('nua', 152)
    A.extend(seq[nb16:nua])
    wait('ut')
    get_nonce(A, 'S', NN, Z, 52, 60)
    arrive(A, 'SU', Z, ONE, 12, C_UA, NN, 62, 73)
    A.extend(seq[nua:])
    for g in b1[nb1:]: emit(g, 'b1')
    emit(pf, 'pf')
    A("s_waitcnt lgkmcnt(0)")
    stamp2(A, opt, 12)
    def uimage():
        depart(A, 'SU', Z, ONE, 14, 12, D_U, NN, 63, 73, 3, 1)
        A(f"""s_lshl_b32 {s(T)}, {s(CG)}, 14
        s_lshl_b32 {s(T+1)}, {s(WV)}, 12
        s_add_u32 {s(T)}, {s(T)}, {s(T+1)}
        s_add_u32 {s(T)}, {s(T)}, {WS_UT}
        s_add_u32 m0, {s(T+1)}, {UB}""")
        for i in range(4):
            A(f"buffer_load_dwordx4 v15, {s(SWS,4)}, {s(T)} offen offset:{i*1024} sc1 lds")
    UA, KAD = 2, 3
    A(f"""
    v_bfe_u32 v36, v1, 2, 3
    v_lshrrev_b32 v37, 5, v1
    v_add3_u32 v36, v36, v37, -1
    v_and_b32 v38, 3, v36
    v_xor_b32 v38, {s(WV)}, v38
    v_lshlrev_b32 v38, 4, v38
    v_lshl_add_u32 v38, v36, 8, v38
    v_and_b32 v39, 3, v1
    v_lshl_add_u32 v38, v39, 6, v38
    v_add_u32 {v(UA)}, {UB}, v38
    v_bfe_u32 v36, v1, 4, 1
    v_lshl_add_u32 v36, v36, 2, v39
    v_bfe_u32 v38, v1, 2, 2
    v_sub_u32 v36, v36, v38
    v_lshlrev_b32 v37, 3, v37
    v_sub_u32 v36, v36, v37
    v_lshlrev_b32 v36, 3, v36
    s_add_u32 {s(T)}, {s(TB)}, {64 + 64 - 32}
    v_add_u32 {v(KAD)}, {s(T)}, v36
    v_cmp_eq_u32 s[60:61], 0, v1
    v_and_b32 v36, 1, v1
    v_cmp_eq_u32 s[80:81], 0, v36
    v_cndmask_b32 v43, 0, v43, s[60:61]
    v_and_b32 v36, 31, v1
    v_lshrrev_b32 v37, 5, v1
    v_lshlrev_b32 v38, 4, v36
    v_add_u32 v38, {s(TB)}, v38
    v_lshl_add_u32 v39, v37, 3, v38
    v_lshl_add_u32 v38, v37, 9, v38
    v_and_b32 v36, 15, v1
    v_lshlrev_b32 v36, 2, v36
    v_add_u32 v36, {s(TB)}, v36
    ds_write_b32 v36, {v(Z)}
    s_lshl_b32 s65, {s(WV)}, 3
    s_add_u32 s65, s65, 100
    s_add_u32 s74, {s(TB)}, {TT2}
    s_mul_i32 s64, {s(WV)}, 12
    s_add_u32 s64, s64, 40
    """)
    uf = opt.get('ufirst', 1)
    if uf: uimage()
    if not opt.get('nohold'): lds_wait(A, 'SH', Z, C_GO, 4, 12)
    stamp2(A, opt, 4)
    A.extend(m0_ + m1_)
    if not uf: uimage()
    ACC, UF, KF = 64, 192, 224
    A(f"""v_add_f32 {v(KA)}, {v(KA)}, v43
    v_cndmask_b32 v40, {v(KA+11)}, {v(KA+10)}, s[80:81]
    v_cndmask_b32 v41, {v(KA+13)}, {v(KA+12)}, s[80:81]""")
    prs = [(0,1),(2,3),(4,4),(5,6),(7,7),(7,8),(8,8),(9,9),(10,10),(10,10),('v40',11),(11,11),(12,12),(12,12),('v41',13),(13,13)]
    wr = {1: "ds_write_b64 v39, v[44:45] offset:64", 3: f"ds_write_b64 v39, v[46:47] offset:{64+512}", 7: f"ds_write_b128 v38, v[48:51] offset:{64+1024}",
          11: f"ds_write_b128 v38, v[52:55] offset:{64+2048}", 15: f"ds_write_b128 v38, v[56:59] offset:{64+3072}"}
    for i, (p, q) in enumerate(prs):
        A(f"v_cvt_pk_bf16_f32 {v(44+i)}, {p if isinstance(p,str) else v(KA+p)}, {v(KA+q)}")
        if i in wr: A(wr[i])
    def piece_t():
        return [["s_mov_b32 m0, s74", f"s_xor_b32 {s(T)}, s65, s75", "s_add_u32 s74, s74, 1024"],
                [f"s_lshl_b32 {s(T)}, {s(T)}, 14", "s_add_u32 s65, s65, 1", f"buffer_load_dwordx4 v8, {s(SWO,4)}, {s(T)} offen lds"]]
    A("s_waitcnt vmcnt(0)")
    A.extend(lds_inc(Z, ONE, C_U))
    if opt.get('nohold'): lds_wait(A, 'SH', Z, C_GO, 4, 6)
    lds_wait(A, 'SV', Z, C_U, 4, 6, sleep=0)
    def rdU(t): return f"ds_read_b128 {v(UF+4*t,4)}, {v(UA)} offset:{t*2048}"
    def rdK(i): return [f"ds_read_b64_tr_b16 {v(KF+4*i+2*j,2)}, {v(KAD)} offset:{i*512 + (1-j)*32}" for j in range(2)]
    for sidx in range(8):
        A(rdU(7-sidx)); A.extend(rdK(sidx))
        if sidx == 3: A("s_waitcnt lgkmcnt(3)")
    A(f"s_mov_b32 {s(SIT)}, 0")
    adv = f"""v_subrev_u32 {v(UA)}, 512, {v(UA)}
    v_add_u32 {v(KAD)}, 128, {v(KAD)}
    v_xor_b32 {v(UA)}, 32, {v(UA)}"""
    def cstep(i, first):
        for t in range(7-i, -1, -1):
            if i == 0 and t <= 5: A(f"s_waitcnt lgkmcnt({3*t})")
            if i == 0 and t == 7: A("s_waitcnt lgkmcnt(15)")
            c = v(ACC+16*(i+t), 16)
            A(f"v_mfma_f32_32x32x16_bf16 {c}, {v(UF+4*t,4)}, {v(KF+4*i,4)}, {0 if first else c}")
            if i == 1 and t in (5, 4): A.extend(piece_t()[5-t])
            if opt['b2'] == 's' and i in (2, 3, 4) and t in (2, 1):
                A.extend([[f"s_lshl_b32 {s(T+1)}, s64, 10", f"s_add_u32 m0, {s(T+1)}, {P0}", f"s_xor_b32 {s(T)}, s64, s75"],
                          [f"s_lshl_b32 {s(T)}, {s(T)}, 14", "s_add_u32 s64, s64, 1", f"buffer_load_dwordx4 v8, {s(SWO,4)}, {s(T)} offen lds"]][2-t])
    A(adv); cstep(0, True); A("s_branch S_conv1")
    A.label('S_conv')
    A(adv); cstep(0, False)
    A.label('S_conv1')
    for i in range(8):
        if i: cstep(i, False)
        A(rdU(7-i)); A.extend(rdK(i))
    A(f"s_add_u32 {s(SIT)}, {s(SIT)}, 1\ns_cmp_lt_u32 {s(SIT)}, 4\ns_cbranch_scc1 S_conv")
    A("s_waitcnt lgkmcnt(0)")
    if opt['b2'] == 's':
        A("s_waitcnt vmcnt(0)"); A.extend(lds_inc(Z, ONE, C_WO))
    stamp2(A, opt, 5)
    A(f"s_sub_u32 s65, s65, 8\ns_mov_b32 s74, {s(TB)}")
    for q in range(4):
        for g in piece_t(): A.extend(g)
    A(f"""s_mov_b32 s60, 0
    s_mov_b32 s61, 0x80000000
    s_mov_b32 s62, 0
    s_mov_b32 s63, 0xc0000000
    s_mov_b32 s74, 0
    s_mov_b32 s75, 0xe0000000
    v_lshrrev_b32 v4, 2, v1
    v_and_b32 v6, 3, v1
    v_lshlrev_b32 v6, 4, v6
    v_lshl_add_u32 v4, v4, 12, v6
    s_lshl_b32 {s(T)}, {s(CB)}, 18
    s_lshl_b32 {s(T+1)}, {s(QI)}, 6
    s_add_u32 {s(T)}, {s(T)}, {s(T+1)}
    s_add_u32 s64, {s(T)}, {WS_YT + 3*65536}""")
    DPP = "wave_ror:1 row_mask:0xf bank_mask:0xf"
    msk = {1: 60, 2: 62, 3: 74}
    yh = opt.get('yhold', 1)
    def yst(z):
        A(f"buffer_store_dwordx4 {v(16+4*z,4)}, v4, {s(SWS,4)}, s64 offen sc1")
        if z: A("s_sub_u32 s64, s64, 65536")
    for z in range(3, -1, -1):
        for half in (1, 0):
            Gs = [8*z + 4*half + g for g in (3, 2, 1, 0)]
            for rho in (3, 2, 1):
                for G in Gs:
                    r = ACC + 4*G + rho
                    A(f"v_cndmask_b32 {v(r)}, {v(r)}, {v(r-4) if G > 0 else 0}, {s(msk[rho],2)}")
            for rho in (2, 1, 0):
                for G in Gs:
                    r = ACC + 4*G + rho
                    A(f"v_add_f32_dpp {v(r)}, {v(r+1)}, {v(r)} {DPP}")
            for pr in (1, 0):
                G = 8*z + 4*half + 2*pr
                A(f"v_cvt_pk_bf16_f32 {v(16+4*z+2*half+pr)}, {v(ACC+4*G)}, {v(ACC+4*G+4)}")
        if z == 2:
            A(f"s_waitcnt vmcnt({0 if yh else 1})"); A.extend(lds_inc(Z, ONE, C_TAIL))
        if not yh: yst(z)
    stamp2(A, opt, 13)
    if yh:
        lds_wait(A, 'SO', Z, *((D_O, 1) if yh == 1 else (C_O, 4)), 6)
        for z in range(3, -1, -1):
            yst(z)
            if z and opt.get('yspread'): A(f"s_sleep {opt['yspread']}")
    A(f"""s_lshl_b32 s62, {s(CB)}, {FP}
    s_add_u32 s62, s62, {WS_YF}
    s_lshl_b32 {s(T+1)}, {s(M)}, 3
    s_add_u32 s63, s62, {s(T+1)}
    s_waitcnt vmcnt(0)""")
    arrive(A, 'SY', Z, ONE, 12, C_Y, NN, 63, 73)
    stamp2(A, opt, 6)
    srd(A, SMI, 50, 8388608)
    A(f"""s_mul_i32 s65, {s(WV)}, 4352
    s_add_u32 s65, s65, {UB-2048}
    v_and_b32 v6, 7, v1
    v_lshrrev_b32 v7, 1, v6
    v_lshlrev_b32 v7, 6, v7
    v_lshl_add_u32 v7, v6, 9, v7
    v_lshrrev_b32 v4, 3, v1
    v_lshl_add_u32 v7, v4, 3, v7
    v_add_u32 v7, s65, v7
    v_and_b32 v4, 1, v4
    v_lshlrev_b32 v4, 20, v4
    v_lshrrev_b32 v13, 4, v1
    v_lshl_add_u32 v4, v13, 12, v4
    v_lshl_add_u32 v4, v6, 4, v4
    s_lshl_b32 {s(T)}, {s(CB)}, 7
    s_lshr_b32 {s(T+1)}, {s(M)}, 2
    s_lshl_b32 {s(T+1)}, {s(T+1)}, 21
    s_add_u32 {s(T)}, {s(T)}, {s(T+1)}
    s_and_b32 {s(T+1)}, {s(QI)}, 15
    s_lshl_b32 {s(T+1)}, {s(T+1)}, 14
    s_add_u32 {s(T)}, {s(T)}, {s(T+1)}
    s_add_u32 s64, {s(T)}, 2048
    s_lshl_b32 {s(T)}, {s(CH)}, 12
    s_add_u32 s74, {s(T)}, {WS_YT}
    s_mov_b32 s60, 0x05040100
    s_mov_b32 s61, 0x07060302""")
    if opt.get('ydelay'): lds_wait(A, 'SD', Z, C_PASS, opt['ydelay'], 6, sleep=4)
    depart(A, 'SY', Z, ONE, 14, 12, D_Y, NN, 62, 73, 3, opt.get('ysleep', 8))
    stamp2(A, opt, 7)
    for i in range(4):
        A(f"s_add_u32 m0, s65, {i*64}\nbuffer_load_dwordx4 v15, {s(SWS,4)}, s74 offen offset:{i*1024} sc1 lds")
    A("s_waitcnt vmcnt(0)")
    for c in range(8): A(f"ds_read_b64 {v(96+2*c,2)}, v7 offset:{c*64}")
    A("s_waitcnt lgkmcnt(0)")
    for i in range(4):
        for cp in range(4):
            A(f"v_perm_b32 {v(112+4*i+cp)}, {v(96+4*cp+2+(i>>1))}, {v(96+4*cp+(i>>1))}, {s(60+(i&1))}")
        A(f"buffer_store_dwordx4 {v(112+4*i,4)}, v4, {s(SMI,4)}, s64 offen{opt['ofl']}")
        if i < 3: A(f"s_add_u32 s64, s64, {64*4096}")
    stamp2_end(A, opt, 1)
    A("s_endpgm")

def cvt_swap(dst, ta, tb):
    return ([f"v_cvt_pk_bf16_f32 {v(dst)}, {v(ta)}, {v(ta+1)}", f"v_cvt_pk_bf16_f32 {v(dst+2)}, {v(tb)}, {v(tb+1)}",
             f"v_cvt_pk_bf16_f32 {v(dst+1)}, {v(ta+2)}, {v(ta+3)}", f"v_cvt_pk_bf16_f32 {v(dst+3)}, {v(tb+2)}, {v(tb+3)}"],
            [f"v_permlane16_swap_b32 {v(dst)}, {v(dst+2)}", f"v_permlane16_swap_b32 {v(dst+1)}, {v(dst+3)}"])

def ph_a(P_, E, t, SL, pk):
    b = []
    mx, mn = t, t+2
    b.append(f"v_max3_f32 {v(mx)}, {v(P_)}, {v(P_+1)}, {v(P_+2)}")
    b.append(f"v_min3_f32 {v(mn)}, {v(P_)}, {v(P_+1)}, {v(P_+2)}")
    for i in range(3, 15, 2):
        b.append(f"v_max3_f32 {v(mx)}, {v(mx)}, {v(P_+i)}, {v(P_+i+1)}")
        b.append(f"v_min3_f32 {v(mn)}, {v(mn)}, {v(P_+i)}, {v(P_+i+1)}")
    b += [f"v_max_f32 {v(mx)}, {v(mx)}, {v(P_+15)}", f"v_min_f32 {v(mn)}, {v(mn)}, {v(P_+15)}",
          f"v_mul_f32 {v(mx)}, 0xbfb8aa3b, {v(mx)}", f"v_mul_f32 {v(mn)}, {LOG2E}, {v(mn)}"]
    h = [f"v_permlane32_swap_b32 {v(mx)}, {v(mn)}", f"v_min_f32 {v(mx)}, {v(mx)}, {v(mn)}",
         f"v_mov_b32 {v(mn)}, {v(mx)}", f"v_permlane32_swap_b32 {v(mx)}, {v(mn)}"]
    f = []
    for i in range(0, 16, 2):
        if pk:
            f.append(f"v_pk_fma_f32 {v(E+i,2)}, {v(P_+i,2)}, {s(SL,2)}, {v(mn,2)} op_sel_hi:[1,1,0] neg_lo:[1,0,0] neg_hi:[1,0,0]")
            f.append(f"v_pk_fma_f32 {v(P_+i,2)}, {v(P_+i,2)}, {s(SL,2)}, {v(mx,2)} op_sel_hi:[1,1,0]")
        else:
            for q in (i, i+1):
                f.append(f"v_fma_f32 {v(E+q)}, -{v(P_+q)}, {s(SL)}, {v(mn)}")
                f.append(f"v_fma_f32 {v(P_+q)}, {v(P_+q)}, {s(SL)}, {v(mx)}")
    return b, h, f

def ph_b(P_, E, t):
    b = []
    sp, sm = t+4, t+6
    for i in range(0, 16, 2):
        b += [f"v_exp_f32 {v(P_+i)}, {v(P_+i)}", f"v_exp_f32 {v(P_+i+1)}, {v(P_+i+1)}",
              f"v_exp_f32 {v(E+i)}, {v(E+i)}", f"v_exp_f32 {v(E+i+1)}, {v(E+i+1)}"]
        if i == 4:
            b += [f"v_pk_add_f32 {v(sp,2)}, {v(P_,2)}, {v(P_+2,2)}", f"v_pk_add_f32 {v(sm,2)}, {v(E,2)}, {v(E+2,2)}"]
        elif i > 4:
            b += [f"v_pk_add_f32 {v(sp,2)}, {v(sp,2)}, {v(P_+i-2,2)}", f"v_pk_add_f32 {v(sm,2)}, {v(sm,2)}, {v(E+i-2,2)}"]
    return b

def ph_c(P_, E, out, t, jj):
    sp, sm = t+4, t+6
    h = [f"v_pk_add_f32 {v(sp,2)}, {v(sp,2)}, {v(P_+14,2)}", f"v_pk_add_f32 {v(sm,2)}, {v(sm,2)}, {v(E+14,2)}",
         f"v_add_f32 {v(sp)}, {v(sp)}, {v(sp+1)}", f"v_add_f32 {v(sm)}, {v(sm)}, {v(sm+1)}",
         f"v_permlane32_swap_b32 {v(sp)}, {v(sm)}", f"v_add_f32 {v(sp)}, {v(sp)}, {v(sm)}",
         f"v_rcp_f32 {v(sp)}, {v(sp)}", f"v_mov_b32 {v(sm)}, {v(sp)}", f"v_permlane32_swap_b32 {v(sp)}, {v(sm)}"]
    b = []
    for q in range(4):
        for sg_, (src, r) in enumerate(((P_, sp), (E, sm))):
            for e in range(2): b.append(f"v_pk_mul_f32 {v(src+4*q+2*e,2)}, {v(src+4*q+2*e,2)}, {v(r,2)} op_sel_hi:[1,0]")
        for sg_, src in enumerate((P_, E)):
            for e in range(2): b.append(f"v_cvt_pk_bf16_f32 {v(out+8*sg_+2*q+e)}, {v(src+4*q+2*e)}, {v(src+4*q+2*e+1)}")
            b.append(f"ds_write_b64 {v(52+q)}, {v(out+8*sg_+2*q,2)} offset:{sg_*8192 + jj*2048}")
    return h, b

def cvts(P_, E, out):
    b = []
    for i in range(8):
        b.append(f"v_cvt_pk_bf16_f32 {v(out+i)}, {v(P_+2*i)}, {v(P_+2*i+1)}")
        b.append(f"v_cvt_pk_bf16_f32 {v(out+8+i)}, {v(E+2*i)}, {v(E+2*i+1)}")
    return b

def fill(chain, filler, gaps):
    o = []
    for i, ins in enumerate(chain):
        for _ in range(gaps.get(i, 0)):
            if filler: o.append(filler.pop(0))
        o.append(ins)
    return o

def role_g(A, opt, stream):
    SL = 56
    HEAD, LAST = 73, 74
    A_P1, A_Z, A_F1, A_L1, A_G1, A_GZ, A_P2, A_KV, A_O, A_O2, A_F3, A_L3, A_OL, A_OUT = range(82, 96)
    WP = 18; NN = 28; Z = 26; ONE = 5
    gn = opt['gn']
    A.label('G_entry')
    if opt.get('gprio'): A(f"s_setprio {opt['gprio']}")
    nafter = gn - 10
    A(f"""s_memrealtime s[62:63]
    v_mov_b32 {v(Z)}, 0
    v_lshlrev_b32 v30, 4, v1
    s_lshr_b32 {s(T)}, {s(WV)}, 1
    s_lshl_b32 {s(T+1)}, {s(HP)}, 1
    s_add_u32 {s(HEAD)}, {s(T)}, {s(T+1)}
    s_lshl_b32 {s(T+2)}, {s(T)}, 11
    s_add_u32 {s(T+2)}, {s(T+2)}, {WPH}
""")
    out_ids(A, opt)
    A(f"""v_lshrrev_b32 v14, 5, v1
    v_bfe_u32 v15, v1, 2, 2
    v_lshl_add_u32 v14, v14, 3, v15
    v_bfe_u32 v16, v1, 4, 1
    v_lshlrev_b32 v16, 5, v16
    v_lshl_add_u32 v16, v14, 6, v16
    v_and_b32 v15, 3, v1
    v_lshl_add_u32 v31, v15, 3, v16
    v_add_u32 v17, {s(T+2)}, v31
    v_lshrrev_b32 v14, 1, v14
    v_lshlrev_b32 v14, 3, v14
    v_xor_b32 v14, v14, v31
    s_lshl_b32 {s(T)}, {s(WV)}, 13
    s_add_u32 {s(T)}, {s(T)}, {PH}
    v_add_u32 v56, {s(T)}, v14
    v_xor_b32 v57, 16, v56""")
    ACC = 64
    loop2.g_addr16(A, 9, 12, 14)
    for r in (9, 10, 12, 13): A(f"v_add_u32 {v(r)}, {P1}, {v(r)}")
    A(f"""v_lshlrev_b32 v51, 2, v1
    v_mov_b32 v14, 1.0
    ds_write_b32 v51, v14 offset:{ONES}
    ds_write_b32 v51, {v(Z)} offset:{FLG}""")
    for i in range(4): A(f"v_mov_b32 {v(160+i)}, 0")
    for i in range(6): A(f"v_mfma_f32_32x32x16_bf16 {v(ACC+16*i,16)}, v[160:163], v[160:163], 0")
    A(f"""v_and_b32 v14, 31, v1
    v_lshrrev_b32 v15, 5, v1
    v_bfe_u32 v16, v1, 1, 3
    v_xor_b32 v16, v15, v16
    v_lshlrev_b32 v16, 3, v16
    v_lshl_add_u32 v16, v14, 6, v16
    s_lshr_b32 {s(T)}, {s(WV)}, 1
    s_lshl_b32 {s(T)}, {s(T)}, 14
    s_and_b32 {s(T+2)}, {s(WV)}, 1
    s_lshl_b32 {s(T+1)}, {s(T+2)}, 12
    s_add_u32 {s(T)}, {s(T)}, {s(T+1)}
    s_add_u32 {s(T)}, {s(T)}, {PH}
    v_add_u32 v52, {s(T)}, v16
    v_xor_b32 v53, 16, v52
    v_xor_b32 v54, 32, v52
    v_xor_b32 v55, 48, v52
    v_lshlrev_b32 v14, 2, v14
    v_lshl_add_u32 v58, v15, 16, v14
    s_lshl_b32 {s(T)}, {s(WV)}, 12
    s_add_u32 {s(T)}, {s(T)}, {VBA}
    v_add_u32 v50, {s(T)}, v30
    s_and_b32 {s(T)}, {s(WV)}, 2
    s_lshl_b32 {s(T)}, {s(T)}, 12
    s_add_u32 {s(T)}, {s(T)}, {VBA}
    v_add_u32 v247, {s(T)}, v30
    s_lshl_b32 {s(T)}, {s(WV)}, 2
    v_mov_b32 v244, {s(T)}
    v_xor_b32 v246, 4, v244
    v_mov_b32 v245, 1
    v_lshrrev_b32 v14, 4, v1
    v_xor_b32 v14, v14, v1
    v_and_b32 v14, 1, v14
    v_subrev_u32 v14, 1, v14
    v_and_b32 v60, 0x3f803f80, v14
    v_mov_b32 v61, v60
    v_mov_b32 v62, v60
    v_mov_b32 v63, v60
    v_and_b32 v14, 15, v1
    v_lshlrev_b32 v248, 3, v14
    v_lshlrev_b32 v14, 4, v14
    v_bfe_u32 v16, v1, 4, 1
    v_lshl_add_u32 v14, v16, 10, v14
    v_lshl_add_u32 v59, v15, 8, v14
    s_lshl_b32 {s(T)}, {s(WV)}, 8
    s_add_u32 {s(T)}, {s(T)}, {ZA}
    v_bfe_u32 v14, v1, 1, 4
    v_and_b32 v16, 1, v1
    v_lshl_add_u32 v14, v16, 4, v14
    v_lshl_add_u32 v14, v15, 5, v14
    v_lshl_add_u32 v242, v14, 2, {s(T)}
    v_mov_b32 v14, {s(T)}
    v_mov_b32 v16, {ONES}
    s_mov_b32 s60, 0xff00ff00
    s_mov_b32 s61, 0xff00ff00
    v_cndmask_b32 v14, v14, v16, s[60:61]
    v_lshl_add_u32 v243, v15, 4, v14
    s_mov_b32 {s(SL)}, {LOG2E}
    s_mov_b32 {s(SL+1)}, {LOG2E}""")
    A(f"""s_lshl_b32 {s(T)}, {s(HP)}, 17
    s_lshl_b32 {s(T+1)}, {s(WV)}, 11
    s_add_u32 {s(T)}, {s(T)}, {s(T+1)}
    s_add_u32 {s(T)}, {s(T)}, {WS_P1}
    s_lshl_b32 {s(T+1)}, {s(RB)}, 13
    s_add_u32 {s(A_P1)}, {s(T)}, {s(T+1)}
    s_lshl_b32 {s(T+3)}, {s(RB)}, 7
    s_add_u32 {s(A_G1)}, {s(T)}, {s(T+3)}
    s_lshl_b32 {s(T)}, {s(HEAD)}, 12
    s_add_u32 {s(A_GZ)}, {s(T)}, {WS_Z}
    s_add_u32 {s(A_KV)}, {s(T)}, {WS_P2}
    s_lshl_b32 {s(T)}, {s(RB)}, 1
    s_add_u32 {s(T)}, {s(T)}, {s(T+2)}
    s_lshl_b32 {s(T+1)}, {s(T)}, 7
    s_add_u32 {s(A_Z)}, {s(A_GZ)}, {s(T+1)}
    s_lshl_b32 {s(T)}, {s(T)}, 17
    s_lshl_b32 {s(T+1)}, {s(HEAD)}, 11
    s_add_u32 {s(T)}, {s(T)}, {s(T+1)}
    s_add_u32 {s(A_O)}, {s(T)}, {WS_O}
    s_add_u32 {s(A_O2)}, {s(A_O)}, 65536
    s_lshl_b32 {s(T)}, {s(T+2)}, 11
    s_add_u32 {s(T)}, {s(T)}, {s(T+3)}
    s_add_u32 {s(A_P2)}, {s(A_KV)}, {s(T)}
    s_lshl_b32 {s(T)}, {s(HP)}, {FP}
    s_add_u32 {s(A_L1)}, {s(T)}, {WS_KF1}
    s_lshl_b32 {s(T)}, {s(RB)}, 3
    s_add_u32 {s(A_F1)}, {s(A_L1)}, {s(T)}
    s_lshl_b32 {s(T)}, {s(RB)}, {FP}
    s_lshl_b32 {s(T+1)}, {s(HP)}, 3
    s_add_u32 {s(T)}, {s(T)}, {s(T+1)}
    s_add_u32 {s(A_F3)}, {s(T)}, {WS_OF}
    s_lshl_b32 {s(T)}, {s(RBO)}, {FP}
    s_add_u32 {s(A_L3)}, {s(T)}, {WS_OF}
    s_lshl_b32 {s(T)}, {s(RBO)}, 2
    s_add_u32 {s(T)}, {s(T)}, {s(WV)}
    s_lshl_b32 {s(T+1)}, {s(T)}, 16
    s_add_u32 {s(A_OL)}, {s(T+1)}, {WS_O}
    s_lshl_b32 {s(T)}, {s(T)}, 17
    s_lshl_b32 {s(T+1)}, {s(NB)}, 7
    s_add_u32 {s(A_OUT)}, {s(T)}, {s(T+1)}""")
    for g in stream[opt['g1']:gn]: A.extend(g)
    A(f"""s_lshl_b32 {s(T+1)}, {s(WV)}, 10
    s_add_u32 m0, {s(T+1)}, {WPH}
    s_lshl_b32 {s(T)}, {s(HP)}, 12
    s_add_u32 {s(T)}, {s(T)}, {s(T+1)}""")
    srd(A, SMI, 36, 65536)
    A(f"buffer_load_dwordx4 v30, {s(SMI,4)}, {s(T)} offen lds"); nafter += 1
    srd(A, SWS, 54, WS_SIZE)
    srd(A, SWO, 52, 256)
    A(f"""s_add_u32 {s(T)}, s2, {s(WV)}
    s_cmp_eq_u32 {s(T)}, 0
    s_cselect_b32 {s(T)}, 0, 0x1000
    s_waitcnt lgkmcnt(0)
    s_or_b32 s63, s63, 0x40000000
    v_mov_b32 {v(NN)}, s62
    v_mov_b32 {v(NN+1)}, s63
    s_mov_b64 exec, 1
    buffer_store_dwordx2 {v(NN,2)}, {v(Z)}, {s(SWO,4)}, {s(T)} offen sc1
    s_mov_b64 exec, -1"""); nafter += 1
    srd(A, SMI, 50, 8388608)
    srd(A, SWO, 80, 2097152)
    A(f"""v_lshrrev_b32 v14, 3, v1
    v_and_b32 v15, 7, v1
    v_and_b32 v16, 6, v14
    v_xor_b32 v15, v15, v16
    v_lshlrev_b32 v15, 4, v15
    v_lshl_add_u32 v15, v14, 11, v15
    s_lshl_b32 {s(T)}, {s(NB)}, 7
    v_add_u32 v32, {s(T)}, v15
    s_lshl_b32 s75, {s(PHS)}, 2
    s_mul_i32 s64, {s(WV)}, 10
    s_lshl_b32 s65, {s(WV)}, 1
    s_mul_i32 s66, {s(WV)}, 12""")
    for i in range(2, 9): A(f"v_mov_b32 {v(i)}, {v(240+i)}")
    A(f"s_waitcnt vmcnt({nafter}) lgkmcnt(0)")
    o2 = dict(opt); o2['ss0'] = 1; o2['gvm'] = 1
    loop2.g_loop16(A, o2, ACC, 160, 9, 12, at_loop=lambda A: (stamp2(A, opt, 1), opt.get('stamps') and A('s_memtime s[98:99]\ns_waitcnt lgkmcnt(0)')))
    stamp2(A, opt, 2)
    if opt.get('stamps'): A('s_memtime s[96:97]\ns_waitcnt lgkmcnt(0)\ns_sub_u32 s96, s96, s98\nv_writelane_b32 v27, s96, 14')
    if opt.get('gprio2'): A(f"s_setprio {opt['gprio2']}")
    for t in range(2):
        for j in range(2):
            A(f"ds_read_b64_tr_b16 {v(WP+4*t+2*j,2)}, v17 offset:{t*1024+j*256}")
    A(f"global_load_dwordx2 {v(NN,2)}, {v(Z)}, s[52:53] sc1")
    tile = lambda p, nn, j: ACC + ((2*p+nn)*4+j)*4
    OUT = (224, 240); PP = (160, 192); EE = (176, 208); TT = (34, 42)
    def pre(p, dst):
        cv, sw, mf = [], [], []
        for jj in range(2):
            for nn in range(2):
                c_, s_ = cvt_swap(dst[jj]+4*nn, tile(p, nn, 2*jj), tile(p, nn, 2*jj+1)); cv.append(c_); sw.append(s_)
            mf.append([f"v_mfma_f32_32x32x16_bf16 {v(PP[jj],16)}, {v(WP,4)}, {v(dst[jj],4)}, 0",
                       f"v_mfma_f32_32x32x16_bf16 {v(PP[jj],16)}, {v(WP+4,4)}, {v(dst[jj]+4,4)}, {v(PP[jj],16)}"])
        return cv, sw, mf
    cv, sw, mf = pre(1, OUT)
    VB = 96
    vcv = [cvt_swap(VB+4*j, tile(2, 0, j), tile(2, 1, j)) for j in range(4)]
    vwr = [f"ds_write_b128 v50, {v(VB+4*i,4)} offset:{i*1024}" for i in range(4)]
    A.extend(cv[0] + cv[1] + sw[0] + sw[1] + cv[2][:2]); A("s_waitcnt lgkmcnt(0)")
    A.extend(mf[0] + cv[2][2:] + cv[3] + sw[2] + sw[3] + vcv[0][0][:2] + mf[1] + vcv[0][0][2:])
    vfill = vcv[1][0] + vcv[0][1] + [vwr[0]] + vcv[2][0] + vcv[1][1] + [vwr[1]] + vcv[3][0] + vcv[2][1] + [vwr[2]]
    a0 = ph_a(PP[0], EE[0], TT[0], SL, True); a1 = ph_a(PP[1], EE[1], TT[1], SL, True)
    c0 = ph_c(PP[0], EE[0], OUT[0], TT[0], 0); c1 = ph_c(PP[1], EE[1], OUT[1], TT[1], 1)
    QB = (128, 136)
    qcv, qsw, qmf = pre(0, QB)
    A.extend(a0[0] + fill(a0[1], vfill, {0: 2, 1: 0, 3: 2}) + a0[2])
    A.extend(merge(ph_b(PP[0], EE[0], TT[0]), a1[0] + a1[1] + a1[2] + vfill + vcv[3][1] + [vwr[3]]))
    stamp2(A, opt, 12)
    A.extend(merge(ph_b(PP[1], EE[1], TT[1]), c0[0] + c0[1]))
    qfill = qcv[0] + qcv[1] + qsw[0] + qcv[2] + qsw[1] + qcv[3] + qsw[2] + qsw[3]
    A.extend(fill(c1[0], qfill, {0: 1, 4: 2, 7: 1, 8: 2}) + c1[1])
    A(f"ds_write_b32 v4, {v(ONE)} offset:{F_PAIR}")
    lds_wait(A, 'GP', 6, F_PAIR, 1, 14, sleep=0)
    stamp2(A, opt, 13)
    TF, VF, KV, ZZ = 160, 192, 96, 112
    def kvm(st):
        return [f"v_mfma_f32_32x32x16_bf16 {v(KV,16)}, {v(TF+4*st,4)}, {v(VF+4*st,4)}, {v(KV,16) if st else 0}",
                f"v_mfma_f32_16x16x32_bf16 {v(ZZ,4)}, v[60:63], {v(TF+4*st,4)}, {v(ZZ,4) if st else 0}"]
    for st in range(8):
        for j in range(2):
            A(f"ds_read_b64_tr_b16 {v(TF+4*st+2*j,2)}, {v(56+j)} offset:{st*1024 + j*256}")
        A(f"ds_read_b128 {v(VF+4*st,4)}, v7 offset:{st*1024}")
        if st >= 4:
            A("s_waitcnt lgkmcnt(12)"); A.extend(kvm(st-4))
    for st in range(4, 8):
        A(f"s_waitcnt lgkmcnt({3*(7-st)})"); A.extend(kvm(st)); A.extend(qfill[:3]); del qfill[:3]
    A.extend(lds_inc(Z, ONE, C_GO))
    A.extend(qfill)
    A(f"""s_mov_b64 exec, 0xffff
    buffer_store_dwordx2 {v(ZZ,2)}, v8, {s(SWS,4)}, {s(A_Z)} offen sc1
    s_mov_b64 exec, -1""")
    for t in range(2):
        for i in range(4): A(f"v_cvt_pk_bf16_f32 {v(116+4*t+i)}, {v(KV+8*t+2*i)}, {v(KV+8*t+2*i+1)}")
        A(f"buffer_store_dwordx4 {v(116+4*t,4)}, v30, {s(SWS,4)}, {s(A_P1)} offen offset:{t*1024} sc1")
        A.extend(qmf[t])
    stamp2(A, opt, 3)
    def qblock(jj):
        x = ph_a(PP[jj], EE[jj], TT[jj], SL, False)
        e = []
        for i in range(16): e += [f"v_exp_f32 {v(PP[jj]+i)}, {v(PP[jj]+i)}", f"v_exp_f32 {v(EE[jj]+i)}, {v(EE[jj]+i)}"]
        return x[0] + x[1] + x[2] + e + cvts(PP[jj], EE[jj], OUT[jj])
    def piece(sb, k):
        return [f"s_add_u32 {s(T)}, {s(sb)}, {k}", f"s_lshl_b32 {s(T+1)}, {s(T)}, 10", f"s_add_u32 m0, {s(T+1)}, {P0}",
                f"s_xor_b32 {s(T)}, {s(T)}, s75", f"s_lshl_b32 {s(T)}, {s(T)}, 14", f"buffer_load_dwordx4 v32, {s(SWO,4)}, {s(T)} offen lds"]
    batch1 = [piece(64, k) for k in range(10)] + [piece(65, 88+k) for k in range(2)]
    batch2 = [piece(66, 40+k) for k in range(12)]
    if opt['b1'] == 's': batch1 = []
    if opt['b2'] == 's': batch2 = []
    def spread(ins, groups, skip):
        if not groups: return ins
        o = list(ins[:skip]); r = ins[skip:]; n = len(groups)
        for q, g in enumerate(groups):
            o += g + list(r[len(r)*q//n:len(r)*(q+1)//n])
        return o
    qb = interleave(qblock(0), qblock(1))
    n1, n2, n3 = opt.get('qs', (90, 50, 40))
    A.extend(qb[:n1]); del qb[:n1]
    A("s_waitcnt vmcnt(0)")
    get_nonce(A, 'G', NN, Z, 52, 58)
    arrive(A, 'G1', Z, ONE, 16, C_K1, NN, A_F1, LAST)
    A.extend(spread(qb[:n2], batch1, opt.get('wskip', 10))); del qb[:n2]
    stamp2(A, opt, 4)
    depart(A, 'G1', Z, ONE, 8, 16, D_K1, NN, A_L1, LAST, 3, opt.get('gsleep', 1))
    stamp2(A, opt, 5)
    for p in range(8):
        A(f"buffer_load_dword {v(64+p)}, v58, {s(SWS,4)}, {s(A_G1)} offen sc1")
        if p < 7: A(f"s_add_u32 {s(A_G1)}, {s(A_G1)}, 8192")
    for p in range(16):
        A(f"buffer_load_dword {v(80+p)}, v51, {s(SWS,4)}, {s(A_GZ)} offen offset:{p*256} sc1")
    def tree(b, n):
        o = []; w_ = n // 2
        while w_:
            o += [f"v_add_f32 {v(b+i)}, {v(b+i)}, {v(b+w_+i)}" for i in range(w_)]; w_ //= 2
        return o
    A(f"s_add_u32 {s(A_F1)}, {s(A_F1)}, {WS_KF2-WS_KF1}\ns_add_u32 {s(A_L1)}, {s(A_L1)}, {WS_KF2-WS_KF1}")
    A.extend(qb[:n3]); del qb[:n3]
    A("s_waitcnt vmcnt(16)")
    for p in range(8): A(f"v_and_b32 {v(72+p)}, 0xffff0000, {v(64+p)}\nv_lshlrev_b32 {v(64+p)}, 16, {v(64+p)}")
    A.extend(interleave(tree(64, 8), tree(72, 8)))
    A(f"""v_permlane32_swap_b32 v64, v72
    v_add_f32 v64, v64, v72
    v_mov_b32 v72, v64
    v_permlane32_swap_b32 v64, v72
    v_cvt_pk_bf16_f32 v16, v64, v72
    s_mov_b32 exec_hi, 0
    buffer_store_dword v16, v51, {s(SWS,4)}, {s(A_P2)} offen sc1
    s_mov_b32 exec_hi, -1
    s_waitcnt vmcnt(1)""")
    def arr2():
        A("s_waitcnt vmcnt(0)")
        arrive(A, 'G2', Z, ONE, 16, C_K2, NN, A_F1, LAST)
        stamp2(A, opt, 6)
    a2 = opt['arr2']
    A.extend(tree(80, 16))
    A("ds_write_b32 v2, v80")
    for i in range(8): A(f"ds_read_b128 {v(64+4*i,4)}, v3 offset:{i*32}")
    if a2 == 0: arr2()
    A.extend(qb)
    if a2 == 1: arr2()
    ZF = 128
    A("s_waitcnt lgkmcnt(0)")
    for i in range(16): A(f"v_cvt_pk_bf16_f32 {v(ZF+i)}, {v(64+2*i)}, {v(65+2*i)}")
    if a2 == 2: arr2()
    DN = ((64, 80), (96, 112))
    for jj in range(2):
        for sg_ in range(2):
            for t in range(2):
                f = 2*sg_ + t; d = v(DN[jj][sg_], 16)
                A(f"v_mfma_f32_32x32x16_bf16 {d}, {v(ZF+4*f,4)}, {v(OUT[jj]+4*f,4)}, {d if t else 0}")
        if a2 == 3 + jj: arr2()
    sc = []
    for jj in range(2):
        t = TT[jj]; dp, dm = DN[jj]
        b = [f"v_rcp_f32 {v(t)}, {v(dp+4)}", f"v_rcp_f32 {v(t+1)}, {v(dm+4)}",
             f"v_mov_b32 {v(t+2)}, 0x358637bd",
             f"v_fma_f32 {v(t+2)}, {v(dp)}, {v(t)}, {v(t+2)}", f"v_fma_f32 {v(t+2)}, {v(dm)}, {v(t+1)}, {v(t+2)}",
             f"v_rcp_f32 {v(t+2)}, {v(t+2)}", f"v_mul_f32 {v(t)}, {v(t)}, {v(t+2)}", f"v_mul_f32 {v(t+1)}, {v(t+1)}, {v(t+2)}"]
        for i in range(16):
            b += [f"v_mul_f32 {v(PP[jj]+i)}, {v(PP[jj]+i)}, {v(t)}", f"v_mul_f32 {v(EE[jj]+i)}, {v(EE[jj]+i)}, {v(t+1)}"]
        sc.append(b + cvts(PP[jj], EE[jj], OUT[jj]))
    sc = interleave(*sc)
    n4 = opt.get('scs', 70)
    A.extend(spread(sc[:n4], batch2, 0))
    stamp2(A, opt, 7)
    depart(A, 'G2', Z, ONE, 8, 16, D_K2, NN, A_L1, LAST, 3, opt.get('gsleep', 1))
    stamp2(A, opt, 8)
    KF = 128; NO = (64, 80)
    for f in range(4):
        A(f"buffer_load_dwordx4 {v(KF+4*f,4)}, v30, {s(SWS,4)}, {s(A_KV)} offen offset:{f*1024} sc1")
    A.extend(sc[n4:])
    for jj in range(2):
        for f in range(4):
            if jj == 0: A(f"s_waitcnt vmcnt({3-f})")
            A(f"v_mfma_f32_32x32x16_bf16 {v(NO[jj],16)}, {v(KF+4*f,4)}, {v(OUT[jj]+4*f,4)}, {v(NO[jj],16) if f else 0}")
    adr = f"""v_lshrrev_b32 v16, 5, v1
    v_bfe_u32 v17, v1, 4, 1
    v_bfe_u32 v33, v1, 2, 2
    v_lshl_add_u32 v17, v17, 2, v33
    v_lshrrev_b32 v33, 1, v17
    v_lshl_add_u32 v17, v16, 4, v17
    v_lshlrev_b32 v17, 7, v17
    v_lshl_add_u32 v17, v33, 5, v17
    v_and_b32 v33, 3, v1
    v_lshl_add_u32 v34, v33, 3, v17
    v_xor_b32 v35, 32, v34
    v_xor_b32 v36, 64, v34
    v_xor_b32 v37, 96, v34""".split('\n')
    A.extend([x.strip() for x in adr[:8]])
    for jj in range(2):
        for t in range(2):
            for i in range(4):
                A(f"v_cvt_pk_bf16_f32 {v(96+8*jj+4*t+i)}, {v(NO[jj]+8*t+2*i)}, {v(NO[jj]+8*t+2*i+1)}")
            A(f"buffer_store_dwordx4 {v(96+8*jj+4*t,4)}, v59, {s(SWS,4)}, {s(A_O+jj)} offen offset:{t*512} sc1")
    A.extend([x.strip() for x in adr[8:]])
    for i in range(4): A(f"v_add_u32 {v(38+i)}, {P0}, {v(34+i)}")
    OA = 64; OFR = 96; WF = 224
    NR = opt.get('oring', 8)
    for i in range(32): A(f"v_mov_b32 {v(OA+i)}, 0")
    A(f"""v_and_b32 v14, 15, v1
    v_lshrrev_b32 v9, 5, v1
    v_and_b32 v10, 7, v1
    v_xor_b32 v10, v9, v10
    v_lshlrev_b32 v10, 4, v10
    v_bfe_u32 v9, v1, 4, 1
    v_lshl_add_u32 v10, v9, 3, v10
    v_lshl_add_u32 v10, v14, 7, v10
    s_lshl_b32 {s(T)}, {s(WV)}, 12
    s_add_u32 {s(T)}, {s(T)}, {P0}
    v_add_u32 v10, {s(T)}, v10
    v_lshrrev_b32 v14, 3, v1
    v_and_b32 v9, 7, v1
    v_xor_b32 v11, v14, v9
    v_lshlrev_b32 v11, 4, v11
    v_lshl_add_u32 v11, v14, 7, v11
    v_add_u32 v11, {s(T)}, v11
    v_lshlrev_b32 v9, 4, v9
    v_lshl_add_u32 v12, v14, 12, v9
    s_mov_b32 s68, 0
    s_mov_b32 s69, 0
    s_waitcnt vmcnt(0)""")
    arrive(A, 'G3', Z, ONE, 16, C_O, NN, A_F3, LAST)
    stamp2(A, opt, 9)
    def rdw(base, off, buf):
        return [f"ds_read_b64_tr_b16 {v(WF+16*buf+4*nn+2*j,2)}, {v(base+nn)} offset:{off + j*1024}" for nn in range(4) for j in range(2)]
    ofl = opt.get('olf', ' sc1')
    def ldo(slot):
        return [[f"s_xor_b32 {s(T)}, s68, {s(PHS)}", f"s_lshl_b32 {s(T)}, {s(T)}, 11"], [f"s_add_u32 {s(T)}, {s(T)}, {s(A_OL)}", "s_add_u32 s68, s68, 1"],
                [f"buffer_load_dwordx4 {v(OFR+8*slot,4)}, v30, {s(SWS,4)}, {s(T)} offen{ofl}"],
                [f"buffer_load_dwordx4 {v(OFR+8*slot+4,4)}, v30, {s(SWS,4)}, {s(T)} offen offset:1024{ofl}"]]
    depart(A, 'G3', Z, ONE, 8, 16, D_O, NN, A_L3, LAST, 3, opt.get('gsleep', 1))
    stamp2(A, opt, 10)
    for sl in range(7):
        for g in ldo(sl): A.extend(g)
    if opt['b2'] == 's': lds_wait(A, 'GW', Z, C_WO, 4, 16)
    elif opt['b1'] == 's': lds_wait(A, 'GW', Z, C_U, 4, 16)
    A.extend(rdw(38, 0, 0))
    def step(i, rd, ld, vm, extra=None):
        A(f"s_waitcnt vmcnt({vm}) lgkmcnt(0)")
        k = 0
        for nn in range(4):
            for a_ in ((0, 1) if nn % 2 == 0 else (1, 0)):
                c = v(OA + (nn*2+a_)*4, 4)
                A(f"v_mfma_f32_16x16x32_bf16 {c}, {v(WF+16*(i&1)+4*nn,4)}, {v(OFR+8*(i&7)+4*a_,4)}, {c}")
                A.extend(rd[2*k:2*k+2])
                if 4 <= k < 4 + len(ld): A.extend(ld[k-4])
                if k == 7 and extra: A.extend(extra)
                k += 1
    A.label('G_out')
    for i in range(8):
        ex = None
        if i == 4: ex = lds_inc(Z, ONE, C_PASS)
        if i == 7: ex = [f"v_add_u32 {v(38+q)}, 32768, {v(38+q)}" for q in range(4)] + ["s_add_u32 s69, s69, 1", "s_cmp_lt_u32 s69, 3"]
        step(i, rdw(38, (i+1)*4096, (i+1) & 1), ldo((i+7) & 7), 12, ex)
    A("s_cbranch_scc1 G_out")
    lds_wait(A, 'GT', Z, C_TAIL, 4, 16)
    A.extend(rdw(34, 0, 0))
    for i in range(8):
        step(i, rdw(34, (i+1)*TT2, (i+1) & 1) if i < 7 else [], ldo(7) if i == 0 else [], 12 if i == 0 else 2*(7-i))
    stamp2(A, opt, 11)
    lds_wait(A, 'GS', Z, C_PASS, 12, 16)
    for nn in range(4):
        A(f"v_xor_b32 v13, {32*nn}, v10")
        for a_ in range(2):
            c = OA + (nn*2+a_)*4; d = 96 + (nn*2+a_)*2
            A(f"""v_cvt_pk_bf16_f32 {v(d)}, {v(c)}, {v(c+1)}
            v_cvt_pk_bf16_f32 {v(d+1)}, {v(c+2)}, {v(c+3)}
            ds_write_b64 v13, {v(d,2)} offset:{a_*2048}""")
    for i in range(4): A(f"ds_read_b128 {v(128+4*i,4)}, v11 offset:{i*1024}")
    for i in range(4):
        A(f"s_waitcnt lgkmcnt({3-i})\nbuffer_store_dwordx4 {v(128+4*i,4)}, v12, {s(SMI,4)}, {s(A_OUT)} offen{opt['ofl']}")
        if i < 3: A(f"s_add_u32 {s(A_OUT)}, {s(A_OUT)}, 32768")
    stamp2_end(A, opt, 0)
    A("s_endpgm")

NAME = 'concat_heads__linear_kernel_hedgehog__ssm_conv_s4d__prompt'
DEF = dict(m16=1, order='aconst', xor=3, xs=[1, 3, 1, 1], rot=5, gprio2=2, gn=17, leads=[7, 10], ofl=' nt', ydelay=8, yhold=0, hswap=1, sbar=1, g1=7, u0=16, nb16=0, b1='g', b2='g', arr2=3, nua=110)
def generate(opt):
    given = {k: v_ for k, v_ in opt.items() if k not in ('stamps', 'list')}
    opt = dict(DEF, **opt)
    hdr = open('cdna_kernels/' + NAME + '.s.ref').read().split('\n')
    hdr = [l for l in hdr if l.startswith(';') and '@launch' not in l and 'Override' not in l and 'grid=ceil' not in l]
    out = '\n'.join(hdr) + '\n'
    kn = NAME + '_kernel'
    if opt.get('stamps'): out += '; opt ' + json.dumps(given) + '\n'
    if opt.get('list'): out += f"; @launch kernel={kn} grid=(256,1,1) block=(512,1,1) lds=163840\n"
    else: out += "; @launch grid=(256,1,1) block=(512,1,1) lds=163840\n"
    out += f'.amdgcn_target "amdgcn-amd-amdhsa--gfx950"\n.text\n.globl {kn}\n.p2align 8\n.type {kn},@function\n'
    A = Asm(); A.label(kn); A.label('K_start')
    L, stream = entry(A, opt)
    role_s(A, dict(opt, _sv=35), L, stream)
    role_g(A, dict(opt, _sv=27), stream)
    A.label('K_end'); A("s_endpgm")
    Ls, n = fix_hazards(A.L, verbose=opt.get('verbose'))
    p = check_waits(Ls)
    if p: print('WAIT PROBLEMS', p[:20])
    out += '\n'.join(('' if l.endswith(':') else '    ') + l for l in Ls) + '\n'
    out += f""".section .rodata,"a"
.p2align 6
.amdhsa_kernel {kn}
  .amdhsa_next_free_vgpr 256
  .amdhsa_next_free_sgpr 102
  .amdhsa_accum_offset 256
  .amdhsa_group_segment_fixed_size 0
  .amdhsa_kernarg_size 112
  .amdhsa_user_sgpr_count 2
  .amdhsa_user_sgpr_kernarg_segment_ptr 1
  .amdhsa_system_sgpr_workgroup_id_x 1
.end_amdhsa_kernel
"""
    print('nops', n, 'instrs', len(Ls))
    return out
if __name__ == '__main__':
    opt = json.loads(sys.argv[2]) if len(sys.argv) > 2 else {}
    open(sys.argv[1], 'w').write(generate(opt))
```

```python
import sys, re; sys.path.insert(0, 'gen')
from mb import *
from asmlib import *
from common import srd
src = open(sys.argv[1]).read().split('\n')
i0 = [i for i, l in enumerate(src) if l.startswith(sys.argv[3])][0] + 1
i1 = [i for i, l in enumerate(src) if l.startswith(sys.argv[4])][0]
body = [l.strip() for l in src[i0:i1]]
out = []; skip = False
for l in body:
    if l.endswith('_lw:') or l.endswith('_poll:'): skip = True
    if l.endswith('lwok:') or l.endswith('pollok:'): skip = False; out.append('s_nop 0 ; SYNC'); continue
    if skip or l.endswith(':') or l.startswith('s_cbranch'): continue
    if l.startswith('buffer_'): l = 's_nop 0 ; VMEM'
    out.append(l)
body = out
N = int(sys.argv[2]) if len(sys.argv) > 2 else 20
def kern(upto):
    A = Asm()
    A("s_load_dwordx2 s[4:5], s[0:1], 0\nv_and_b32 v1, 63, v0\ns_waitcnt lgkmcnt(0)")
    srd(A, 8, 4, 1<<20)
    for i in range(2, 256): A(f"v_mov_b32 v{i}, 0")
    A("v_lshlrev_b32 v50, 4, v0\nv_lshlrev_b32 v7, 4, v0\nv_lshlrev_b32 v52, 3, v0\nv_mov_b32 v53, v52\nv_mov_b32 v54, v52\nv_mov_b32 v55, v52\nv_mov_b32 v56, v52\nv_mov_b32 v57, v52\nv_mov_b32 v17, v52\nv_mov_b32 v9, v52\nv_mov_b32 v10, v52\ns_mov_b64 s[60:61], -1\ns_mov_b32 s56, 1.0\ns_mov_b32 s57, 1.0\ns_mov_b32 s30, 0")
    A.label('L')
    A("s_barrier\ns_memtime s[12:13]\ns_waitcnt lgkmcnt(0)")
    A.extend(body[:upto])
    A("s_mov_b64 exec, -1\ns_memtime s[14:15]\ns_waitcnt lgkmcnt(0)\ns_nop 15\ns_nop 15\ns_add_u32 s30, s30, 1\ns_cmp_lt_u32 s30, 3\ns_cbranch_scc1 L")
    A("s_sub_u32 s16, s14, s12\nv_mov_b32 v40, s16\ns_lshl_b32 s3, s2, 12\nv_lshlrev_b32 v1, 2, v0\nv_add_u32 v1, s3, v1\nbuffer_store_dword v40, v1, s[8:11], 0 offen\ns_waitcnt vmcnt(0)")
    return '\n'.join(A.L) + '\n'
pts = list(range(N, len(body), N)) + [len(body)]
cos = {p: build('t_kernel', kern(p), 64, 256, lds=65536, vgpr=256, nptr=1, tag=f'ke_{p}') for p in pts}
if on_gpu():
    out = DeviceBuffer(1<<20); prev = 0; pp = 0
    for p, co in cos.items():
        run(co, 't_kernel', 64, 256, 65536, [out], iters=2)
        r = out.to_numpy(np.uint32, (256, 1024))[:64, :256].astype(np.float64).mean()
        seg = body[pp:p]; ideal = sum(8 if re.match(r'v_(exp|rcp|permlane|mfma)', x) else 4*(int(x.split()[1])+1) if x.startswith('s_nop') else 4 for x in seg)
        from collections import Counter
        c = Counter(x.split()[0].replace('v_', '').replace('_f32', '').replace('_b32', '') for x in seg)
        print('%4d total %5d  seg %4d ideal %4d  %s' % (p, r, r - prev, ideal, ' '.join('%s:%d' % kv for kv in c.most_common(6))))
        prev = r; pp = p
```
